```python
import torch

def _softmax(x, axis=-1):
    return torch.softmax(x, dim=axis)
def _gelu(x):
    return torch.nn.functional.gelu(x, approximate="tanh")
def _silu(x):
    return torch.nn.functional.silu(x)
def _sigmoid(x):
    return torch.sigmoid(x)
def _layernorm(x, axis=-1, eps=1e-5):
    m = x.mean(dim=axis, keepdim=True)
    v = x.var(dim=axis, keepdim=True, unbiased=False)
    return (x - m) / torch.sqrt(v + eps)
def _scatter_add(tgt, idx, src, axis=0):
    return tgt.clone().index_add_(axis, idx, src)
def _segment_sum(src, seg, n):
    out = torch.zeros((n,) + src.shape[1:], dtype=src.dtype)
    return out.index_add_(0, seg, src)
def _pad(x, pw):
    flat = tuple(v for pair in reversed(pw) for v in pair)
    return torch.nn.functional.pad(x, flat)

kernel_name = 'gated_mix__mha_block__linear_attn_block__prompt'

def setup_inputs():

    _w = (lambda a: (lambda t: t.to(torch.bfloat16) if t.is_floating_point() else t)(torch.as_tensor(a)))
    def _A_setup():
        B, S, D, H = 1, 2048, 512, 32
        return {
            "x": _w((lambda *s: torch.randn(*s, dtype=torch.bfloat16) * 0.05)(B, S, D)),
            "wqkv": _w((lambda *s: torch.randn(*s, dtype=torch.bfloat16) * 0.8)(D, 3 * D)),
            "wo": _w((lambda *s: torch.randn(*s, dtype=torch.bfloat16) * 0.05)(D, D)),
        }
    _A_in = _A_setup()

    def _B_setup():
        B, S, D = 1, 2048, 512
        return {
            "x": _w((lambda *s: torch.randn(*s, dtype=torch.bfloat16) * 0.05)(B, S, D)),
            "wqkv": _w((lambda *s: torch.randn(*s, dtype=torch.bfloat16) * 0.8)(D, 3 * D)),
            "wo": _w((lambda *s: torch.randn(*s, dtype=torch.bfloat16) * 0.2)(D, D)),
        }
    _B_in = _B_setup()

    return {
        "A_x": _A_in["x"],
        "A_wqkv": _A_in["wqkv"],
        "A_wo": _A_in["wo"],
        "B_x": _B_in["x"],
        "B_wqkv": _B_in["wqkv"],
        "B_wo": _B_in["wo"],
        "gate_w": _w((lambda *s: torch.randn(*s, dtype=torch.bfloat16) * 0.05)(512) * 16.0),
    }

def reference(A_x, A_wqkv, A_wo, B_x, B_wqkv, B_wo, gate_w):
    def _A_ref(x, wqkv, wo):
        B, S, D = x.shape
        H = 32
        Dh = D // H
        qkv = (lambda x, *d: x.permute(*d))((x @ wqkv).reshape(B, S, 3, H, Dh), 2, 0, 3, 1, 4)
        q, k, v = qkv[0], qkv[1], qkv[2]
        scores = torch.einsum("bhqd,bhkd->bhqk", q, k) * (Dh ** -0.5)
        p = _softmax(scores, axis=-1)
        o = torch.einsum("bhqk,bhkd->bhqd", p, v)
        return (lambda x, *d: x.permute(*d))(o, 0, 2, 1, 3).reshape(B, S, D) @ wo

    def _B_ref(x, wqkv, wo):
        B, S, D = x.shape
        H = 32; Dh = D // H
        qkv = (lambda x, *d: x.permute(*d))((x @ wqkv).reshape(B, S, 3, H, Dh), 2, 0, 3, 1, 4)
        q, k, v = qkv[0], qkv[1], qkv[2]
        phi = lambda t: torch.where(t > 0, t + 1, torch.exp(t)) + 1e-6
        pq, pk = phi(q), phi(k)
        kv = torch.einsum("bhsd,bhse->bhde", pk, v)
        z = torch.einsum("bhsd->bhd", pk)
        num = torch.einsum("bhqd,bhde->bhqe", pq, kv)
        den = torch.einsum("bhqd,bhd->bhq", pq, z)[..., None] + 1e-6
        o = num / den
        return (lambda x, *d: x.permute(*d))(o, 0, 2, 1, 3).reshape(B, S, D) @ wo

    x = A_x
    g = _sigmoid((x * gate_w).sum(-1, keepdims=True))
    a = _A_ref(x, A_wqkv, A_wo)
    b = _B_ref(x, B_wqkv, B_wo)
    return g * a + (1 - g) * b
```

```python
import re

class Asm:
    def __init__(self):
        self.L = []
    def __call__(self, s):
        for line in s.split("\n"):
            line = line.strip()
            if line:
                self.L.append(line)
    def label(self, n):
        self.L.append(n + ":")
    def text(self):
        out = []
        for l in self.L:
            out.append(l if l.endswith(":") or l.startswith(".") else "    " + l)
        return "\n".join(out) + "\n"

def vr(a, n): return f"v[{a}:{a+n-1}]" if n > 1 else f"v{a}"
def sr(a, n): return f"s[{a}:{a+n-1}]" if n > 1 else f"s{a}"
def mfma(d, a, b, c): return f"v_mfma_f32_32x32x16_bf16 {vr(d,16)}, {vr(a,4)}, {vr(b,4)}, {vr(c,16) if isinstance(c,int) and c >= 0 else 0}"
def mfmaz(d, a, b): return f"v_mfma_f32_32x32x16_bf16 {vr(d,16)}, {vr(a,4)}, {vr(b,4)}, 0"
def mfma16(d, a, b, c=None): return f"v_mfma_f32_16x16x32_bf16 {vr(d,4)}, {vr(a,4)}, {vr(b,4)}, {vr(c,4) if c is not None else 0}"
def smfmac(d, a, b, idx): return f"v_smfmac_f32_32x32x32_bf16 {vr(d,16)}, {vr(a,4)}, {vr(b,8)}, v{idx}"
def srd(d, s, n):
    return f"s_mov_b32 s{d}, s{s}\ns_mov_b32 s{d+1}, s{s+1}\ns_mov_b32 s{d+2}, {n}\ns_mov_b32 s{d+3}, 0x20000"

_REG = re.compile(r"(?<![\w.])([vs])(?:\[(\d+):(\d+)\]|(\d+))(?![\w])")
TRANS = ("v_exp_", "v_log_", "v_rcp_", "v_rsq_", "v_sqrt_", "v_sin_", "v_cos_")

def regs(op):
    out = set()
    for m in _REG.finditer(op):
        k = m.group(1)
        if m.group(2): out |= {(k, i) for i in range(int(m.group(2)), int(m.group(3)) + 1)}
        else: out.add((k, int(m.group(4))))
    if re.search(r"\bvcc\b", op): out.add(("s", "vcc"))
    if re.search(r"\bm0\b", op): out.add(("s", "m0"))
    if re.search(r"\bexec\b", op): out.add(("s", "exec"))
    return out

def parse(line):
    line = line.split(";")[0].strip()
    if not line or line.endswith(":") or line.startswith("."): return None
    p = line.split(None, 1)
    mn = p[0]; ops = [o.strip() for o in p[1].split(",")] if len(p) > 1 else []
    d = dict(mn=mn, line=line, w=set(), r=set(), ws=1, kind="other", srcc=set(), ab=set(), data=set())
    if mn == "s_nop": d["ws"] = int(ops[0]) + 1; return d
    if mn.startswith("v_mfma") or mn.startswith("v_smfmac"):
        d["kind"] = "mfma"; d["w"] = regs(ops[0]); d["ab"] = regs(ops[1]) | regs(ops[2])
        last = ops[3].split()[0]
        if mn.startswith("v_smfmac"): d["srcc"] = regs(ops[0]); d["ab"] |= regs(last)
        else: d["srcc"] = regs(last)
        d["r"] = d["ab"] | d["srcc"]; d["passes"] = 8 if "32x32" in mn else 4
        return d
    if mn.startswith("v_"):
        d["kind"] = "valu"
        if mn.startswith("v_cmp"): d["w"] = regs(ops[0]); d["r"] = set().union(*[regs(o) for o in ops[1:]])
        elif mn.startswith("v_permlane"): d["w"] = regs(ops[0]) | regs(ops[1]); d["r"] = set(d["w"])
        elif mn.startswith(("v_add_co", "v_addc_co", "v_sub_co", "v_div_scale")):
            d["w"] = regs(ops[0]) | regs(ops[1]); d["r"] = set().union(*[regs(o) for o in ops[2:]])
        else:
            d["w"] = regs(ops[0]); d["r"] = set().union(*[regs(o) for o in ops[1:]]) if len(ops) > 1 else set()
            if mn.startswith(("v_fmac", "v_dot2c")) or "dpp" in line or "row_" in line or "quad_perm" in line: d["r"] |= d["w"]
        d["dpp"] = "row_" in line or "quad_perm" in line or "dpp" in mn
        return d
    if mn.startswith(("buffer_", "global_")):
        d["kind"] = "vmem"
        if "store" in mn or "atomic" in mn:
            allr = set().union(*[regs(o) for o in ops]); d["r"] = allr
            d["data"] = regs(ops[0]) if mn.startswith("buffer_") else regs(ops[1])
            d["wide"] = "x4" in mn or "x3" in mn
        elif " lds" in line or "_lds_" in mn:
            d["r"] = set().union(*[regs(o) for o in ops]) | {("s", "m0")}; d["dma"] = True
        elif ops:
            d["w"] = regs(ops[0]); d["r"] = set().union(*[regs(o) for o in ops[1:]])
        return d
    if mn.startswith("ds_"):
        d["kind"] = "ds"
        if "write" in mn or "add" in mn: d["r"] = set().union(*[regs(o) for o in ops])
        else: d["w"] = regs(ops[0]); d["r"] = set().union(*[regs(o) for o in ops[1:]])
        return d
    if mn.startswith("s_"):
        d["kind"] = "salu"
        if mn.startswith(("s_cmp", "s_cbranch", "s_branch", "s_waitcnt", "s_barrier", "s_endpgm", "s_setprio", "s_sleep")):
            d["r"] = set().union(*[regs(o) for o in ops]) if ops else set()
        else:
            d["w"] = regs(ops[0]); d["r"] = set().union(*[regs(o) for o in ops[1:]]) if len(ops) > 1 else set()
            if "saveexec" in mn: d["w"].add(("s", "exec"))
        return d
    return d

def need(p, c):
    n = 0
    V = lambda s: {x for x in s if x[0] == "v"}
    S = lambda s: {x for x in s if x[0] == "s"}
    if p["kind"] == "valu":
        if c["kind"] == "mfma" and V(p["w"]) & c["r"]: n = max(n, 2)
        if c["kind"] == "valu":
            if p["mn"].startswith(TRANS) and not c["mn"].startswith(TRANS) and V(p["w"]) & c["r"]: n = max(n, 1)
            if c["mn"].startswith("v_permlane") and V(p["w"]) & c["r"]: n = max(n, 2)
            if c.get("dpp") and V(p["w"]) & c["r"]: n = max(n, 2)
            if c["mn"].startswith(("v_readlane", "v_readfirstlane")) and V(p["w"]) & c["r"]: n = max(n, 1)
            if S(p["w"]) & c["r"]: n = max(n, 4 if c["mn"].startswith(("v_div_fmas", "v_readlane", "v_writelane")) else 2)
        if c["kind"] == "vmem" and S(p["w"]) & c["r"]: n = max(n, 5)
    if p["kind"] == "mfma":
        ps = p["passes"]
        if c["kind"] == "mfma":
            if p["w"] & c["ab"]: n = max(n, ps + 4)
            if p["w"] & c["srcc"] and not (p["w"] == c["srcc"] and ps == c["passes"]): n = max(n, ps + 2)
            if p["w"] & c["w"] and not (p["w"] & c["srcc"]) and p["w"] != c["w"]: n = max(n, ps + 2)
        elif c["kind"] in ("valu", "vmem", "ds"):
            if p["w"] & (c["r"] | c["w"]): n = max(n, ps + 4)
            if c["kind"] == "valu" and p["srcc"] & c["w"]: n = max(n, ps - 1)
    if p["kind"] == "vmem" and p.get("wide") and p["data"] & c["w"]: n = max(n, 2 if c["kind"] == "valu" else 1)
    if p["kind"] == "salu" and ("s", "m0") in p["w"] and c.get("dma"): n = max(n, 1)
    return n

def check(lines, name=""):
    ins = []; labels = {}
    for l in lines:
        if l.endswith(":"): labels[l[:-1]] = len(ins); continue
        d = parse(l)
        if d: ins.append(d)
    bad = 0
    def scan(seq, start):
        nonlocal bad
        for i in range(start, len(seq)):
            dist = 0
            for j in range(i - 1, max(-1, i - 24), -1):
                k = need(seq[j], seq[i])
                if k > dist:
                    print(f"HAZARD[{name}] need {k} have {dist}: '{seq[j]['line']}' -> '{seq[i]['line']}'"); bad += 1
                dist += seq[j]["ws"]
                if dist >= 20 or seq[j]["mn"] in ("s_branch", "s_endpgm"): break
    scan(ins, 0)
    for i, d in enumerate(ins):
        if d["mn"].startswith(("s_cbranch", "s_branch")):
            t = labels.get(d["line"].split()[-1])
            if t is None: continue
            tail = [dict(x) for x in ins[max(0, i - 24):i + 1]]
            tail[-1]["mn"] = "s_taken"
            scan(tail + ins[t:t + 24], len(tail))
    return bad
```

```python
import sys, struct
from asmlib import *

QA, KA, VA, QB, OC, KVP, GG = 0x000000, 0x200000, 0x400000, 0x600000, 0x800000, 0xC00000, 0xE00000
WS_BYTES = 0x1000000
KVP_PART = 1088
def f32(x): return "0x%08x" % struct.unpack("<I", struct.pack("<f", x))[0]
LOG2E = 1.4426950408889634
QSCALE = 0.25 * LOG2E

def desc(name, vgpr, sgpr=96):
    return f""".section .rodata,"a"
.p2align 6
.amdhsa_kernel {name}
  .amdhsa_next_free_vgpr {vgpr}
  .amdhsa_next_free_sgpr {sgpr}
  .amdhsa_accum_offset {(vgpr + 3) // 4 * 4}
  .amdhsa_group_segment_fixed_size 0
  .amdhsa_kernarg_size 80
  .amdhsa_user_sgpr_count 2
  .amdhsa_user_sgpr_kernarg_segment_ptr 1
  .amdhsa_system_sgpr_workgroup_id_x 1
.end_amdhsa_kernel
"""
def head(name): return f".text\n.globl {name}\n.p2align 8\n.type {name},@function\n{name}:\n"

def phi(a, t, tmp, n, s_l2e, s_eps):
    for i in range(0, n, 2): a(f"v_pk_mul_f32 {vr(tmp+i,2)}, {vr(t+i,2)}, {sr(s_l2e,2)}")
    for i in range(n): a(f"v_exp_f32_e64 v{tmp+i}, v{tmp+i} clamp")
    for i in range(n): a(f"v_max_f32 v{t+i}, 0, v{t+i}")
    for i in range(0, n, 2): a(f"v_pk_add_f32 {vr(tmp+i,2)}, {vr(tmp+i,2)}, {sr(s_eps,2)}")
    for i in range(0, n, 2): a(f"v_pk_add_f32 {vr(t+i,2)}, {vr(t+i,2)}, {vr(tmp+i,2)}")

def pack(a, dst, src, n):
    for j in range(n): a(f"v_cvt_pk_bf16_f32 v{dst+j}, v{src+2*j}, v{src+2*j+1}")

def k1():
    a = Asm()
    SLOT = 40960
    a(f"""
    s_cmp_ge_u32 s2, 256
    s_cbranch_scc1 K1_end
    s_load_dwordx4 s[4:7], s[0:1], 0
    s_load_dwordx2 s[24:25], s[0:1], 32
    s_load_dwordx2 s[26:27], s[0:1], 48
    s_load_dwordx2 s[28:29], s[0:1], 72
    v_lshrrev_b32 v1, 6, v0
    v_and_b32 v10, 63, v0
    s_and_b32 s30, s2, 7
    v_readfirstlane_b32 s36, v1
    s_lshr_b32 s31, s2, 3
    s_and_b32 s32, s31, 7
    s_and_b32 s37, s30, 1
    s_lshl_b32 s37, s37, 3
    s_add_u32 s32, s32, s37
    s_lshr_b32 s33, s31, 3
    s_lshr_b32 s37, s30, 1
    s_lshl_b32 s37, s37, 2
    s_add_u32 s33, s33, s37
    s_and_b32 s34, s33, 1
    s_lshr_b32 s35, s33, 1
    s_waitcnt lgkmcnt(0)
    """)
    a(srd(8, 4, "0x200000"))
    a("s_cmp_eq_u32 s34, 0\ns_cselect_b32 s12, s6, s24\ns_cselect_b32 s13, s7, s25\ns_mov_b32 s14, 0x180000\ns_mov_b32 s15, 0x20000")
    a(srd(16, 28, hex(WS_BYTES)))
    a(srd(20, 26, "1024"))
    a("s_cmp_lt_u32 s36, 4\ns_cbranch_scc1 K1_compute")
    a(f"""
    s_sub_u32 s36, s36, 4
    v_lshlrev_b32 v11, 4, v10
    s_lshl_b32 s38, s2, 3
    s_lshl_b32 s37, s36, 1
    s_add_u32 s38, s38, s37
    s_lshl_b32 s39, s38, 10
    buffer_load_dwordx4 v[16:19], v11, s[8:11], s39 offen
    buffer_load_dwordx4 v[20:23], v11, s[8:11], s39 offen offset:1024
    buffer_load_dwordx4 v[24:27], v11, s[20:23], 0 offen
    v_lshrrev_b32 v1, 3, v10
    v_and_b32 v2, 7, v10
    v_lshrrev_b32 v3, 4, v10
    v_xor_b32 v4, v2, v3
    v_lshlrev_b32 v4, 4, v4
    v_lshl_add_u32 v4, v1, 10, v4
    v_xor_b32 v5, 64, v4
    v_and_b32 v3, 1, v3
    v_lshlrev_b32 v3, 2, v3
    v_xor_b32 v6, v2, v3
    v_lshlrev_b32 v6, 4, v6
    v_mul_u32_u24 v1, 0xc00, v1
    v_add_u32 v6, v6, v1
    s_lshl_b32 s40, s32, 17
    s_lshl_b32 s37, s36, 15
    s_add_u32 s40, s40, s37
    s_lshl_b32 s41, s35, 7
    s_mul_i32 s37, s36, {16*3072}
    s_add_u32 s41, s41, s37
    s_lshl_b32 s42, s36, 12
    s_lshl_b32 s43, s36, 11
    s_add_u32 s43, s43, 16384
    """)
    def issue(c):
        slot = (c % 4) * SLOT
        for i in range(4):
            a(f"s_add_u32 m0, s42, {slot + i*1024}\ns_add_u32 s44, s40, {i*8192 + c*128}\nbuffer_load_dwordx4 v{4 + (i & 1)}, s[8:11], s44 offen lds")
        for r in range(2):
            for seg in range(3):
                a(f"s_add_u32 m0, s43, {slot + seg*8192 + r*1024}\ns_add_u32 s44, s41, {(c*64 + r*8)*3072 + seg*1024}\nbuffer_load_dwordx4 v6, s[12:15], s44 offen lds")
    for c in range(4): issue(c)
    a("s_waitcnt vmcnt(30)\ns_barrier")
    for j in range(4):
        a(f"v_lshlrev_b32 v{28+2*j}, 16, v{24+j}\nv_and_b32 v{29+2*j}, 0xffff0000, v{24+j}")
    for row in range(2):
        x = 16 + 4 * row
        for j in range(4):
            a(f"v_lshlrev_b32 v36, 16, v{x+j}\nv_and_b32 v37, 0xffff0000, v{x+j}")
            a(f"v_mul_f32 v36, v36, v{28+2*j}\nv_mul_f32 v37, v37, v{29+2*j}\nv_cvt_pk_bf16_f32 v38, v36, v37")
            a(f"v_lshlrev_b32 v36, 16, v38\nv_and_b32 v37, 0xffff0000, v38\nv_add_f32 v36, v36, v37")
            a(f"v_mov_b32 v{40+row}, v36" if j == 0 else f"v_add_f32 v{40+row}, v{40+row}, v36")
    for sh in (8, 4, 2, 1):
        a(f"s_nop 1\nv_add_f32_dpp v40, v40, v40 row_ror:{sh} row_mask:0xf bank_mask:0xf\nv_add_f32_dpp v41, v41, v41 row_ror:{sh} row_mask:0xf bank_mask:0xf")
    a("s_nop 0")
    for row in range(2):
        for k in range(4): a(f"v_readlane_b32 s{48+4*row+k}, v{40+row}, {16*k}")
    a("s_nop 1")
    for row in range(2):
        a(f"v_mov_b32 v{40+row}, s{48+4*row}")
        for k in range(1, 4): a(f"v_add_f32 v{40+row}, s{48+4*row+k}, v{40+row}")
    a(f"""
    v_cvt_pk_bf16_f32 v38, v40, v41
    v_lshlrev_b32 v40, 16, v38
    v_and_b32 v41, 0xffff0000, v38
    v_mul_f32 v40, {f32(-LOG2E)}, v40
    v_mul_f32 v41, {f32(-LOG2E)}, v41
    v_exp_f32 v40, v40
    v_exp_f32 v41, v41
    s_nop 0
    v_add_f32 v40, 1.0, v40
    v_add_f32 v41, 1.0, v41
    v_rcp_f32 v40, v40
    v_rcp_f32 v41, v41
    s_nop 0
    v_cvt_pk_bf16_f32 v38, v40, v41
    v_lshlrev_b32 v44, 16, v38
    v_and_b32 v46, 0xffff0000, v38
    v_sub_f32 v40, 1.0, v44
    v_sub_f32 v41, 1.0, v46
    v_cvt_pk_bf16_f32 v38, v40, v41
    v_lshlrev_b32 v45, 16, v38
    v_and_b32 v47, 0xffff0000, v38
    s_lshl_b32 s39, s38, 3
    s_add_u32 s39, s39, {GG}
    """)
    for c in range(1, 8):
        a(f"s_waitcnt vmcnt({20 if c <= 5 else (10 if c == 6 else 0)})\ns_barrier")
        if c + 3 <= 7: issue(c + 3)
    a("""
    v_mov_b32 v1, 0
    s_mov_b64 exec, 1
    buffer_store_dwordx4 v[44:47], v1, s[16:19], s39 offen
    s_endpgm
    """)
    a.label("K1_compute")
    ACC = lambda tt, sec: 16 + (tt * 3 + sec) * 16
    SET = [112, 132]
    a(f"""
    s_and_b32 s38, s36, 1
    s_lshr_b32 s39, s36, 1
    v_and_b32 v1, 31, v10
    v_lshrrev_b32 v2, 5, v10
    v_bfe_u32 v3, v10, 1, 3
    v_xor_b32 v3, v3, v2
    v_lshlrev_b32 v3, 4, v3
    v_lshl_add_u32 v4, v1, 7, v3
    s_lshl_b32 s37, s38, 13
    v_add_u32 v4, s37, v4
    v_xor_b32 v5, 32, v4
    v_xor_b32 v6, 64, v4
    v_xor_b32 v7, 0x60, v4
    v_bfe_u32 v3, v10, 2, 2
    v_lshl_add_u32 v3, v2, 3, v3
    v_lshlrev_b32 v8, 7, v3
    v_bfe_u32 v3, v10, 3, 1
    v_xor_b32 v3, s39, v3
    v_lshl_add_u32 v8, v3, 6, v8
    v_bfe_u32 v3, v10, 4, 1
    v_lshl_add_u32 v8, v3, 5, v8
    v_and_b32 v3, 3, v10
    v_lshl_add_u32 v8, v3, 3, v8
    v_add_u32 v8, 0x4000, v8
    s_mov_b32 s44, 0
    s_mov_b32 s55, {SLOT}
    """)
    for r in range(16, 112): a(f"v_mov_b32 v{r}, 0")
    def reads(s, ks):
        b = SET[s]
        R = [f"ds_read_b128 {vr(b,4)}, v{4+ks}", None, None, f"ds_read_b128 {vr(b+4,4)}, v{4+ks} offset:4096"]
        W = lambda sec, u: f"ds_read_b64_tr_b16 {vr(b+8+4*sec+2*u,2)}, v8 offset:{sec*8192 + ks*2048 + u*512}"
        return [R[0], W(0,0), W(0,1), W(1,0), W(1,1), W(2,0), W(2,1), R[3]]
    def mms(s, br):
        b = SET[s]; M = []
        for tt in range(2):
            for sec in range(3):
                x = b + 4 * tt; w = b + 8 + 4 * sec
                transposed = sec == 0 or (sec == 1 and br == 0)
                M.append(mfma(ACC(tt, sec), w, x, ACC(tt, sec)) if transposed else mfma(ACC(tt, sec), x, w, ACC(tt, sec)))
        return M
    def step(M, R, extra=()):
        a(M[0]); [a(x) for x in R[0:3]]
        a(M[1]); [a(x) for x in R[3:6]]
        a(M[2]); [a(x) for x in R[6:8]]
        a(M[3]); [a(x) for x in extra]
        a(M[4]); a(M[5])
    a("s_barrier")
    for x in reads(0, 0): a(x)
    a("s_cmp_eq_u32 s34, 0\ns_cbranch_scc0 K1_loopB")
    for br in range(2):
        n = "AB"[br]
        a.label(f"K1_loop{n}")
        a("s_waitcnt lgkmcnt(0)"); step(mms(0, br), reads(1, 1))
        a("s_waitcnt lgkmcnt(0)"); step(mms(1, br), reads(0, 2), [f"s_cmp_eq_u32 s44, 3", f"s_cselect_b32 s45, {-3*SLOT}, s55", "s_add_u32 s44, s44, 1"])
        a("s_waitcnt lgkmcnt(0)"); step(mms(0, br), reads(1, 3), [f"v_add_u32 v{r}, s45, v{r}" for r in range(4, 9)])
        a(f"s_cmp_eq_u32 s44, 8\ns_waitcnt lgkmcnt(0)\ns_cbranch_scc1 K1_last{n}\ns_barrier")
        step(mms(1, br), reads(0, 0))
        a(f"s_branch K1_loop{n}")
        a.label(f"K1_last{n}")
        for x in mms(1, br): a(x)
        a(f"""
        s_lshl_b32 s46, s35, 2
        s_lshl_b32 s37, s39, 1
        s_add_u32 s47, s46, s37
        s_lshl_b32 s46, s47, 6
        s_lshl_b32 s37, s32, 2
        s_add_u32 s46, s46, s37
        s_lshl_b32 s37, s38, 1
        s_add_u32 s46, s46, s37
        s_lshl_b32 s46, s46, 10
        v_lshlrev_b32 v4, 4, v10
        """)
        if br == 0:
            a(f"""
            v_and_b32 v5, 0x33, v10
            v_bfe_u32 v1, v10, 2, 1
            v_lshl_add_u32 v5, v1, 3, v5
            v_bfe_u32 v1, v10, 3, 1
            v_lshl_add_u32 v5, v1, 2, v5
            v_lshlrev_b32 v5, 4, v5
            v_and_b32 v6, 15, v10
            v_lshl_add_u32 v6, v2, 4, v6
            v_lshlrev_b32 v6, 4, v6
            v_bfe_u32 v1, v10, 4, 1
            v_lshl_add_u32 v6, v1, 16, v6
            s_mov_b32 s48, {f32(QSCALE)}
            s_mov_b32 s49, {f32(QSCALE)}
            s_add_u32 s50, s46, {QA}
            s_add_u32 s51, s46, {QA + 65536}
            s_add_u32 s52, s46, {KA}
            s_add_u32 s53, s46, {KA + 65536}
            s_add_u32 s54, s46, {VA}
            s_nop 3
            """)
            for tt in range(2):
                k = ACC(tt, 1); pack(a, k, k, 8)
                a(f"buffer_store_dwordx4 {vr(k,4)}, v5, s[16:19], s52 offen offset:{tt*1024}")
                a(f"buffer_store_dwordx4 {vr(k+4,4)}, v5, s[16:19], s53 offen offset:{tt*1024}")
                v = ACC(tt, 2); pack(a, v, v, 8)
                a(f"buffer_store_dwordx4 {vr(v,4)}, v6, s[16:19], s54 offen offset:{tt*1024}")
                a(f"buffer_store_dwordx4 {vr(v+4,4)}, v6, s[16:19], s54 offen offset:{tt*1024+512}")
                q = ACC(tt, 0)
                for i in range(0, 16, 2): a(f"v_pk_mul_f32 {vr(q+i,2)}, {vr(q+i,2)}, s[48:49]")
                pack(a, q, q, 8)
                a(f"buffer_store_dwordx4 {vr(q,4)}, v4, s[16:19], s50 offen offset:{tt*1024}")
                a(f"buffer_store_dwordx4 {vr(q+4,4)}, v4, s[16:19], s51 offen offset:{tt*1024}")
            a("s_endpgm")
        else:
            a(f"""
            s_add_u32 s50, s46, {QB}
            s_add_u32 s51, s46, {QB + 65536}
            s_mov_b32 s48, {f32(LOG2E)}
            s_mov_b32 s49, {f32(LOG2E)}
            s_mov_b32 s52, {f32(1e-6)}
            s_mov_b32 s53, {f32(1e-6)}
            v_mov_b32 v148, 0x3f803f80
            v_mov_b32 v149, 0x3f803f80
            v_mov_b32 v150, 0x3f803f80
            v_mov_b32 v151, 0x3f803f80
            s_nop 3
            """)
            for tt in range(2):
                q = ACC(tt, 0); pack(a, q, q, 8)
                a(f"buffer_store_dwordx4 {vr(q,4)}, v4, s[16:19], s50 offen offset:{tt*1024}")
                a(f"buffer_store_dwordx4 {vr(q+4,4)}, v4, s[16:19], s51 offen offset:{tt*1024}")
            KV, Z = 152, 168
            for tt in range(2):
                k = ACC(tt, 1); v = ACC(tt, 2)
                pack(a, v, v, 8)
                phi(a, k, 112, 16, 48, 52)
                pack(a, k, k, 8)
                a("s_nop 1")
                for jj in range(2):
                    first = tt == 0 and jj == 0
                    a(mfmaz(KV, k + 4*jj, v + 4*jj) if first else mfma(KV, k + 4*jj, v + 4*jj, KV))
                    a(mfmaz(Z, k + 4*jj, 148) if first else mfma(Z, k + 4*jj, 148, Z))
            a(f"""
            v_bfe_u32 v1, v10, 4, 1
            v_cmp_eq_u32 vcc, 1, v1
            v_mul_u32_u24 v5, {32*KVP_PART}, v1
            v_lshl_add_u32 v6, v2, 5, v5
            v_and_b32 v3, 15, v10
            v_lshl_add_u32 v3, v2, 4, v3
            v_lshl_add_u32 v5, v3, 5, v5
            s_mul_i32 s54, s47, {32*KVP_PART}
            s_lshl_b32 s37, s32, 1
            s_add_u32 s37, s37, s38
            s_mul_i32 s37, s37, {KVP_PART}
            s_add_u32 s54, s54, s37
            s_add_u32 s54, s54, {KVP}
            """)
            for r in range(8): a(f"v_cndmask_b32 v{KV+r}, v{KV+r}, v{KV+8+r}, vcc")
            a(f"buffer_store_dwordx4 {vr(KV,4)}, v5, s[16:19], s54 offen")
            a(f"buffer_store_dwordx4 {vr(KV+4,4)}, v5, s[16:19], s54 offen offset:16")
            for r in range(8): a(f"v_cndmask_b32 v{Z+r}, v{Z+r}, v{Z+8+r}, vcc")
            a("s_mov_b32 exec_lo, 0x00010001\ns_mov_b32 exec_hi, 0x00010001")
            a(f"buffer_store_dwordx4 {vr(Z,4)}, v6, s[16:19], s54 offen offset:1024")
            a(f"buffer_store_dwordx4 {vr(Z+4,4)}, v6, s[16:19], s54 offen offset:1040")
    a.label("K1_end")
    a("s_endpgm")
    return a, 184

def k2():
    a = Asm()
    S = [4, 20]; Q = [36, 40]; O = [44, 60]; KF = [76, 80]; VF = [84, 92]
    AK, AV, IDX = 1, 2, 3
    LANE, L16, PQ, GV, T0, T1 = 100, 101, 104, 108, 112, 128
    XCH = 131072
    a(f"""
    s_cmp_ge_u32 s2, 256
    s_cbranch_scc1 K2_end
    s_load_dwordx2 s[4:5], s[0:1], 72
    v_lshrrev_b32 v1, 6, v0
    v_and_b32 v{LANE}, 63, v0
    s_and_b32 s30, s2, 7
    v_readfirstlane_b32 s32, v1
    s_lshr_b32 s31, s2, 3
    s_lshl_b32 s30, s30, 2
    s_lshr_b32 s37, s31, 3
    s_add_u32 s30, s30, s37
    s_and_b32 s31, s31, 7
    s_and_b32 s33, s32, 3
    s_lshr_b32 s34, s32, 2
    v_lshlrev_b32 v{L16}, 4, v{LANE}
    s_lshl_b32 s35, s31, 3
    s_lshl_b32 s37, s33, 1
    s_add_u32 s35, s35, s37
    s_add_u32 s36, s35, s34
    s_xor_b32 s37, s34, 1
    s_add_u32 s35, s35, s37
    s_lshl_b32 s38, s30, 16
    s_lshl_b32 s39, s36, 10
    s_add_u32 s39, s39, s38
    s_lshl_b32 s40, s35, 10
    s_add_u32 s40, s40, s38
    s_add_u32 s41, s39, {QB}
    s_lshl_b32 s42, s36, 8
    s_add_u32 s42, s42, {GG}
    s_mul_i32 s43, s30, {32*KVP_PART}
    s_mul_i32 s37, s32, {4*KVP_PART}
    s_add_u32 s43, s43, s37
    s_add_u32 s43, s43, {KVP}
    v_and_b32 v4, 31, v{LANE}
    v_lshrrev_b32 v5, 5, v{LANE}
    v_lshlrev_b32 v6, 3, v4
    v_and_b32 v7, 15, v{LANE}
    v_lshl_add_u32 v7, v5, 4, v7
    v_lshlrev_b32 v{AV}, 4, v7
    v_lshlrev_b32 v7, 5, v7
    v_lshlrev_b32 v8, 5, v5
    v_add_u32 v8, 0x400, v8
    v_cmp_gt_u32 vcc, 16, v4
    s_lshl_b32 s44, s34, 15
    s_lshl_b32 s37, s33, 10
    s_add_u32 s45, s44, s37
    v_cndmask_b32 v7, v8, v7, vcc
    s_add_u32 s46, s45, s38
    s_waitcnt lgkmcnt(0)
    """)
    a(srd(8, 4, hex(WS_BYTES)))
    for p in range(4):
        a(f"buffer_load_dwordx4 {vr(T0+8*p,4)}, v7, s[8:11], s43 offen offset:{p*KVP_PART}")
        a(f"buffer_load_dwordx4 {vr(T0+8*p+4,4)}, v7, s[8:11], s43 offen offset:{p*KVP_PART+16}")
    a(f"""
    buffer_load_dwordx4 {vr(PQ,4)}, v{L16}, s[8:11], s41 offen
    buffer_load_dwordx2 {vr(GV,2)}, v6, s[8:11], s42 offen
    buffer_load_dwordx4 {vr(Q[0],4)}, v{L16}, s[8:11], s39 offen
    buffer_load_dwordx4 {vr(Q[1],4)}, v{L16}, s[8:11], s40 offen
    """)
    for i in range(8):
        a(f"s_add_u32 m0, s45, {i*4096}\ns_add_u32 s37, s46, {KA + i*4096}\nbuffer_load_dwordx4 v{L16}, s[8:11], s37 offen lds")
        a(f"s_add_u32 m0, s45, {65536 + i*4096}\ns_add_u32 s37, s46, {VA + i*4096}\nbuffer_load_dwordx4 v{L16}, s[8:11], s37 offen lds")
    a(f"""
    v_add_u32 v{AK}, s44, v{L16}
    s_add_u32 s37, s44, 65536
    v_add_u32 v{AV}, s37, v{AV}
    v_mov_b32 v{IDX}, 0xdddd
    s_mov_b32 s24, 0xffff
    s_mov_b32 s25, 0xffff
    s_mov_b32 s48, {f32(LOG2E)}
    s_mov_b32 s49, {f32(LOG2E)}
    s_mov_b32 s52, {f32(1e-6)}
    s_mov_b32 s53, {f32(1e-6)}
    s_lshl_b32 s37, s32, 11
    s_add_u32 s37, s37, {XCH}
    v_add_u32 v9, s37, v{L16}
    v_add_u32 v10, {XCH}, v{L16}
    """)
    for r in range(16): a(f"v_mov_b32 v{VF[0]+r}, 0x3f803f80")
    for r in range(32): a(f"v_mov_b32 v{O[0]+r}, 0")
    a("s_waitcnt vmcnt(20)")
    for p in (1, 3):
        for r in range(0, 8, 2): a(f"v_pk_add_f32 {vr(T0+8*(p-1)+r,2)}, {vr(T0+8*(p-1)+r,2)}, {vr(T0+8*p+r,2)}")
    for r in range(0, 8, 2): a(f"v_pk_add_f32 {vr(T0+r,2)}, {vr(T0+r,2)}, {vr(T0+16+r,2)}")
    a(f"ds_write_b128 v9, {vr(T0,4)}\nds_write_b128 v9, {vr(T0+4,4)} offset:1024")
    a("s_waitcnt vmcnt(18)")
    for j in range(4): a(f"v_lshlrev_b32 v{12+2*j}, 16, v{PQ+j}\nv_and_b32 v{13+2*j}, 0xffff0000, v{PQ+j}")
    phi(a, 12, 20, 8, 48, 52)
    pack(a, PQ, 12, 4)
    a("s_waitcnt lgkmcnt(0)\ns_barrier")
    for hf in range(2):
        for w in range(4):
            a(f"ds_read_b128 {vr(T0+8*w,4)}, v10 offset:{(4*hf+w)*2048}\nds_read_b128 {vr(T0+8*w+4,4)}, v10 offset:{(4*hf+w)*2048+1024}")
        for w in range(4):
            a(f"s_waitcnt lgkmcnt({6-2*w})")
            for r in range(0, 8, 2):
                if hf == 0 and w == 0: a(f"v_pk_add_f32 {vr(12+r,2)}, {vr(T0+r,2)}, 0")
                else: a(f"v_pk_add_f32 {vr(12+r,2)}, {vr(12+r,2)}, {vr(T0+8*w+r,2)}")
    pack(a, 12, 12, 4)
    a("s_nop 1")
    a(mfmaz(S[1], 12, PQ))
    a(f"""
    s_lshl_b32 s47, s36, 16
    s_lshl_b32 s37, s30, 10
    s_add_u32 s47, s47, s37
    s_add_u32 s47, s47, {OC}
    s_add_u32 s50, s47, 32768
    s_nop 6
    v_add_f32 v12, s52, v{S[1]+8}
    v_rcp_f32 v12, v12
    s_nop 0
    v_mul_f32 v12, v12, v{GV+1}
    """)
    for r in range(8): a(f"v_mul_f32 v{S[1]+r}, v{S[1]+r}, v12")
    pack(a, T0, S[1], 4)
    a(f"buffer_store_dwordx4 {vr(T0,4)}, v{L16}, s[8:11], s50 offen")
    kread = lambda t: f"ds_read_b128 {vr(KF[t&1],4)}, v{AK} offset:{t*1024}"
    def vread(t):
        a("s_mov_b64 exec, s[24:25]")
        a(f"ds_read_b128 {vr(VF[t&1],4)}, v{AV} offset:{t*1024}\nds_read_b128 {vr(VF[t&1]+4,4)}, v{AV} offset:{t*1024+512}")
        a("s_mov_b64 exec, -1")
    a("s_waitcnt vmcnt(15)\ns_barrier")
    a(kread(0)); a(kread(1)); vread(0)
    a("s_waitcnt lgkmcnt(3)")
    a(mfmaz(S[0], KF[0], Q[0]))
    a("s_nop 10\ns_waitcnt lgkmcnt(0)")
    NT = 32
    for i in range(2 * NT):
        t, q = i >> 1, i & 1
        cur, nxt = S[i & 1], S[(i + 1) & 1]
        e = [f"v_exp_f32 v{cur+r}, v{cur+r}" for r in range(16)]
        if i == 4: a("s_waitcnt vmcnt(9)\ns_barrier")
        if i == 28: a("s_waitcnt vmcnt(1)\ns_barrier")
        [a(x) for x in e[0:2]]
        if i > 0: a(smfmac(O[q ^ 1], VF[((i - 1) >> 1) & 1] + 4, nxt + 8, IDX))
        if q == 0 and t + 1 < NT: vread(t + 1)
        [a(x) for x in e[2:5]]
        if i + 1 < 2 * NT:
            t1, q1 = (i + 1) >> 1, (i + 1) & 1
            if q1 == 0: a("s_waitcnt lgkmcnt(0)")
            a(mfmaz(nxt, KF[t1 & 1], Q[q1]))
            if q1 == 1 and t1 + 2 < NT: a(kread(t1 + 2))
        [a(x) for x in e[5:10]]
        a(smfmac(O[q], VF[t & 1], cur, IDX))
        [a(x) for x in e[10:16]]
    a("s_nop 1")
    a(smfmac(O[1], VF[(NT - 1) & 1] + 4, S[1] + 8, IDX))
    a(f"""
    s_mul_i32 s37, s32, 2304
    s_add_u32 s37, s37, {XCH}
    v_add_u32 v9, s37, v{L16}
    v_lshl_add_u32 v11, v{LANE}, 2, s37
    s_xor_b32 s37, s32, 4
    s_mul_i32 s37, s37, 2304
    s_add_u32 s37, s37, {XCH}
    v_add_u32 v10, s37, v{L16}
    v_lshl_add_u32 v12, v{LANE}, 2, s37
    s_nop 2
    ds_write_b128 v9, {vr(O[1],4)}
    ds_write_b128 v9, {vr(O[1]+4,4)} offset:1024
    ds_write_b32 v11, v{O[1]+8} offset:2048
    s_waitcnt lgkmcnt(0)
    s_barrier
    ds_read_b128 {vr(T0,4)}, v10
    ds_read_b128 {vr(T0+4,4)}, v10 offset:1024
    ds_read_b32 v{T0+8}, v12 offset:2048
    s_mov_b32 s54, {f32(2.0**-30)}
    s_mov_b32 s55, {f32(2.0**60)}
    s_movk_i32 s56, 0x207
    s_waitcnt lgkmcnt(0)
    """)
    for r in range(9): a(f"v_add_f32 v{O[0]+r}, v{O[0]+r}, v{T0+r}")
    a(f"v_cmp_nle_f32 s[58:59], s54, v{O[0]+8}\nv_cmp_nge_f32 vcc, s55, v{O[0]+8}\ns_or_b64 s[58:59], s[58:59], vcc")
    for r in range(8): a(f"v_cmp_class_f32 vcc, v{O[0]+r}, s56\ns_or_b64 s[58:59], s[58:59], vcc")
    a("s_cmp_lg_u64 s[58:59], 0\ns_cbranch_scc1 K2_slow")
    a.label("K2_fin")
    a(f"v_rcp_f32 v12, v{O[0]+8}\ns_nop 0\nv_mul_f32 v12, v12, v{GV}")
    for r in range(8): a(f"v_mul_f32 v{O[0]+r}, v{O[0]+r}, v12")
    pack(a, O[0], O[0], 4)
    a(f"buffer_store_dwordx4 {vr(O[0],4)}, v{L16}, s[8:11], s47 offen")
    a("s_endpgm")
    a.label("K2_slow")
    M, MN, AL = 12, 13, 14
    a(f"""
    v_mov_b32 v{M}, 0xff800000
    v_and_b32 v7, 15, v{LANE}
    v_lshrrev_b32 v5, 5, v{LANE}
    v_lshl_add_u32 v7, v5, 4, v7
    v_lshlrev_b32 v7, 4, v7
    s_add_u32 s60, s38, {KA}
    s_add_u32 s61, s38, {VA}
    s_mov_b32 s62, 0
    """)
    for r in range(16): a(f"v_mov_b32 v{O[0]+r}, 0")
    a.label("K2_slow_loop")
    a(f"""
    buffer_load_dwordx4 {vr(KF[0],4)}, v{L16}, s[8:11], s60 offen
    s_mov_b64 exec, s[24:25]
    buffer_load_dwordx4 {vr(VF[0],4)}, v7, s[8:11], s61 offen
    buffer_load_dwordx4 {vr(VF[0]+4,4)}, v7, s[8:11], s61 offen offset:512
    s_mov_b64 exec, -1
    s_waitcnt vmcnt(0)
    """)
    a(mfmaz(S[1], KF[0], Q[0]))
    a("s_nop 11")
    a(f"v_max3_f32 v{MN}, v{M}, v{S[1]}, v{S[1]+1}")
    for r in range(2, 16, 2): a(f"v_max3_f32 v{MN}, v{MN}, v{S[1]+r}, v{S[1]+r+1}")
    a(f"""
    v_mov_b32 v{AL}, v{MN}
    s_nop 1
    v_permlane32_swap_b32 v{AL}, v{MN}
    v_max_f32 v{MN}, v{MN}, v{AL}
    v_sub_f32 v{AL}, v{M}, v{MN}
    v_exp_f32 v{AL}, v{AL}
    v_mov_b32 v{M}, v{MN}
    """)
    for r in range(16): a(f"v_sub_f32 v{S[1]+r}, v{S[1]+r}, v{MN}")
    for r in range(16): a(f"v_exp_f32 v{S[1]+r}, v{S[1]+r}")
    for r in range(9): a(f"v_mul_f32 v{O[0]+r}, v{O[0]+r}, v{AL}")
    a("s_nop 1")
    a(smfmac(O[0], VF[0], S[1], IDX))
    a(smfmac(O[0], VF[0] + 4, S[1] + 8, IDX))
    a(f"""
    s_add_u32 s60, s60, 1024
    s_add_u32 s61, s61, 1024
    s_add_u32 s62, s62, 1
    s_nop 7
    s_cmp_lt_u32 s62, 64
    s_cbranch_scc1 K2_slow_loop
    s_nop 1
    s_branch K2_fin
    """)
    a.label("K2_end")
    a("s_endpgm")
    return a, 144

def k3():
    a = Asm()
    AF = 48; ACC = [16, 32]; WF = [112, 120]
    a(f"""
    s_cmp_ge_u32 s2, 256
    s_cbranch_scc1 K3_end
    s_load_dwordx2 s[4:5], s[0:1], 72
    s_load_dwordx2 s[6:7], s[0:1], 16
    s_load_dwordx2 s[24:25], s[0:1], 40
    s_load_dwordx2 s[26:27], s[0:1], 56
    v_lshrrev_b32 v1, 6, v0
    v_and_b32 v10, 63, v0
    s_and_b32 s30, s2, 7
    v_readfirstlane_b32 s32, v1
    s_lshr_b32 s31, s2, 3
    s_lshl_b32 s30, s30, 2
    s_lshr_b32 s37, s31, 3
    s_add_u32 s30, s30, s37
    s_and_b32 s31, s31, 7
    s_and_b32 s33, s32, 1
    s_lshr_b32 s34, s32, 1
    v_lshlrev_b32 v11, 4, v10
    v_lshrrev_b32 v1, 3, v10
    v_and_b32 v2, 7, v10
    v_bfe_u32 v3, v10, 4, 1
    v_lshlrev_b32 v3, 2, v3
    v_xor_b32 v2, v2, v3
    v_lshlrev_b32 v2, 4, v2
    v_lshl_add_u32 v12, v1, 10, v2
    s_lshl_b32 s35, s30, 1
    s_add_u32 s35, s35, s33
    s_lshl_b32 s35, s35, 16
    s_lshl_b32 s37, s34, 14
    s_add_u32 s35, s35, s37
    s_add_u32 s35, s35, {OC}
    s_and_b32 s36, s34, 1
    s_lshl_b32 s36, s36, 18
    s_lshl_b32 s37, s33, 13
    s_add_u32 s36, s36, s37
    s_lshl_b32 s37, s31, 7
    s_add_u32 s36, s36, s37
    s_lshl_b32 s38, s34, 15
    s_lshl_b32 s37, s33, 10
    s_add_u32 s39, s38, s37
    s_waitcnt lgkmcnt(0)
    """)
    a(srd(8, 4, hex(WS_BYTES)))
    a("s_cmp_lt_u32 s34, 2\ns_cselect_b32 s12, s6, s24\ns_cselect_b32 s13, s7, s25\ns_mov_b32 s14, 0x80000\ns_mov_b32 s15, 0x20000")
    a(srd(16, 26, "0x200000"))
    for i in range(16):
        a(f"s_add_u32 m0, s39, {i*2048}\ns_add_u32 s37, s36, {i*16384}\nbuffer_load_dwordx4 v12, s[12:15], s37 offen lds")
        a(f"s_add_u32 s37, s35, {(i >> 2)*4096}\nbuffer_load_dwordx4 {vr(AF+4*i,4)}, v11, s[8:11], s37 offen offset:{(i & 3)*1024}")
    a(f"""
    v_lshrrev_b32 v2, 5, v10
    v_bfe_u32 v3, v10, 2, 2
    v_lshl_add_u32 v3, v2, 2, v3
    v_lshlrev_b32 v4, 7, v3
    v_bfe_u32 v3, v10, 3, 1
    v_lshl_add_u32 v4, v3, 6, v4
    v_bfe_u32 v3, v10, 4, 1
    v_lshl_add_u32 v4, v3, 5, v4
    v_and_b32 v3, 3, v10
    v_lshl_add_u32 v4, v3, 3, v4
    v_add_u32 v4, s38, v4
    v_xor_b32 v5, 64, v4
    """)
    def wreads(i):
        b = WF[i & 1]
        return [f"ds_read_b64_tr_b16 {vr(b+4*nt+2*u,2)}, v{4+nt} offset:{i*2048+u*1024}" for nt in range(2) for u in range(2)]
    for i in range(16):
        if i % 4 == 0:
            a(f"s_waitcnt vmcnt({32 - 8*(i//4 + 1)})\ns_barrier")
            for x in wreads(i): a(x)
        nxt = wreads(i + 1) if (i + 1) % 4 else []
        a(f"s_waitcnt lgkmcnt(0)")
        b = WF[i & 1]
        a(mfmaz(ACC[0], b, AF + 4*i) if i == 0 else mfma(ACC[0], b, AF + 4*i, ACC[0]))
        for x in nxt: a(x)
        a(mfmaz(ACC[1], b + 4, AF + 4*i) if i == 0 else mfma(ACC[1], b + 4, AF + 4*i, ACC[1]))
    a(f"""
    v_and_b32 v1, 31, v10
    v_and_b32 v3, 7, v10
    v_lshlrev_b32 v4, 4, v3
    v_lshl_add_u32 v4, v1, 8, v4
    v_bfe_u32 v3, v10, 1, 1
    v_xor_b32 v3, v3, v2
    v_lshl_add_u32 v4, v3, 7, v4
    s_lshl_b32 s37, s34, 14
    s_lshl_b32 s40, s33, 13
    s_add_u32 s37, s37, s40
    v_add_u32 v4, s37, v4
    s_barrier
    """)
    for nt in range(2):
        for rq in range(4):
            fc = 4 * nt + rq
            a(f"v_xor_b32 v5, {fc*16}, v4\nds_write_b128 v5, {vr(ACC[nt]+4*rq,4)}")
    a(f"""
    v_lshrrev_b32 v1, 3, v0
    v_and_b32 v2, 7, v0
    v_and_b32 v3, 7, v1
    v_xor_b32 v3, v3, v2
    v_lshlrev_b32 v4, 4, v3
    v_lshl_add_u32 v4, v1, 8, v4
    v_bfe_u32 v3, v1, 1, 1
    v_lshl_add_u32 v4, v3, 7, v4
    v_xor_b32 v5, 0x80, v4
    v_lshlrev_b32 v6, 4, v2
    v_lshl_add_u32 v6, v1, 10, v6
    s_lshl_b32 s40, s30, 16
    s_lshl_b32 s37, s31, 7
    s_add_u32 s40, s40, s37
    s_waitcnt lgkmcnt(0)
    s_barrier
    """)
    for kq in range(4):
        a(f"ds_read_b128 {vr(AF+8*kq,4)}, v4 offset:{kq*16384}\nds_read_b128 {vr(AF+8*kq+4,4)}, v5 offset:{kq*16384}")
    a("s_waitcnt lgkmcnt(4)")
    for r in range(0, 8, 2): a(f"v_pk_add_f32 {vr(AF+r,2)}, {vr(AF+r,2)}, {vr(AF+8+r,2)}")
    a("s_waitcnt lgkmcnt(0)")
    for r in range(0, 8, 2): a(f"v_pk_add_f32 {vr(AF+16+r,2)}, {vr(AF+16+r,2)}, {vr(AF+24+r,2)}")
    for r in range(0, 8, 2): a(f"v_pk_add_f32 {vr(AF+r,2)}, {vr(AF+r,2)}, {vr(AF+16+r,2)}")
    pack(a, AF, AF, 4)
    a(f"buffer_store_dwordx4 {vr(AF,4)}, v6, s[16:19], s40 offen")
    a.label("K3_end")
    a("s_endpgm")
    return a, 128

HEADER = open("gated_mix__mha_block__linear_attn_block__prompt.s.ref").read().split("; Override launch")[0]

def build():
    parts = [("qkv_kernel", k1, 163840), ("attn_kernel", k2, 131072 + 8 * 2304), ("proj_kernel", k3, 131072)]
    s = HEADER
    for n, _, lds in parts: s += f"; @launch kernel={n} grid=(256,1,1) block=(512,1,1) lds={lds}\n"
    s += '.amdgcn_target "amdgcn-amd-amdhsa--gfx950"\n'
    bad = 0
    for n, f, _ in parts:
        a, vg = f()
        bad += check(a.L, n)
        s += head(n) + a.text() + desc(n, vg)
    return s, bad

if __name__ == "__main__":
    s, bad = build()
    out = sys.argv[1] if len(sys.argv) > 1 else "gated_mix__mha_block__linear_attn_block__prompt.s"
    open(out, "w").write(s)
    print("hazards:", bad, "bytes:", len(s))
```

```python
import sys, struct
from asmlib import *

NAME = "gated_mix__mha_block__linear_attn_block__prompt_kernel"
QA, KA, VA, QB, OA, OB, KVP, GG = 0x000000, 0x200000, 0x400000, 0x600000, 0x800000, 0xA00000, 0xC00000, 0xE00000
F1, F2, F3, F4, STAMP = 0xE40000, 0xE48000, 0xE80000, 0xEC0000, 0xF00000
WS_BYTES = 0x1000000
KVP_PART = 1088
def f32(x): return "0x%08x" % struct.unpack("<I", struct.pack("<f", x))[0]
LOG2E = 1.4426950408889634
QSCALE = 0.25 * LOG2E
SPIN = 60000
OPT = dict(diag=False, map1="r8q4")

WS, SX, SWA, SWB, SG, SOA, SOB, SOUT, SDBG = 8, 12, 16, 20, 24, 28, 32, 36, 40
def S4(r): return f"s[{r}:{r+3}]"
WAVE, RB1, Q1, HEAD, QBK, EP, T = 44, 45, 46, 47, 48, 49, 50
C_L2E, C_EPS, VMASK = 52, 54, 56
TO, SOFF = 58, 59
A0 = 60
LANE, L16 = 1, 2
SLOT = 24576
XB = 98304
XCH = 131072

def stamp(a, k):
    if OPT["diag"]: a(f"s_memrealtime s[{72+2*k}:{73+2*k}]\ns_waitcnt lgkmcnt(0)")

def phi(a, t, tmp, n):
    for i in range(0, n, 2): a(f"v_pk_mul_f32 {vr(tmp+i,2)}, {vr(t+i,2)}, {sr(C_L2E,2)}")
    for i in range(n): a(f"v_exp_f32_e64 v{tmp+i}, v{tmp+i} clamp")
    for i in range(n): a(f"v_max_f32 v{t+i}, 0, v{t+i}")
    for i in range(0, n, 2): a(f"v_pk_add_f32 {vr(tmp+i,2)}, {vr(tmp+i,2)}, {sr(C_EPS,2)}")
    for i in range(0, n, 2): a(f"v_pk_add_f32 {vr(t+i,2)}, {vr(t+i,2)}, {vr(tmp+i,2)}")

def pack(a, dst, src, n):
    for j in range(n): a(f"v_cvt_pk_bf16_f32 v{dst+j}, v{src+2*j}, v{src+2*j+1}")

def dma(a, lds_s, lds_imm, src_s, src_imm, v, srd_, aux=""):
    a(f"s_add_u32 m0, s{lds_s}, {lds_imm}\ns_add_u32 s{T}, s{src_s}, {src_imm}\nbuffer_load_dwordx4 v{v}, {S4(srd_)}, s{T} offen {aux} lds")

def poll_issue(a, vdst, vaddr, soff):
    a(f"buffer_load_dword v{vdst}, v{vaddr}, {S4(WS)}, s{soff} offen sc1")
def poll_wait(a, name, vdst, vaddr, soff, cnt=0):
    a(f"""
    s_waitcnt vmcnt({cnt})
    v_cmp_ne_u32 vcc, s{EP}, v{vdst}
    s_mov_b32 s{T}, 0
    s_cbranch_vccz {name}_ok
    {name}_spin:
    buffer_load_dword v{vdst}, v{vaddr}, {S4(WS)}, s{soff} offen sc1
    s_add_u32 s{T}, s{T}, 1
    s_cmp_gt_u32 s{T}, {SPIN}
    s_waitcnt vmcnt(0)
    v_cmp_ne_u32 vcc, s{EP}, v{vdst}
    s_cbranch_scc1 {name}_ok
    s_cbranch_vccnz {name}_spin
    {name}_ok:
    """)
def epoch_issue(a, v, vz): a(f"v_mov_b32 v{vz}, 0\nbuffer_load_dword v{v}, v{vz}, {S4(SDBG)}, 0 offen sc1")
def epoch_wait(a, name, v, vz, cnt):
    a(f"""
    s_waitcnt vmcnt({cnt})
    v_readfirstlane_b32 s{EP}, v{v}
    s_mov_b32 s{T}, 0
    s_cmp_lg_u32 s{EP}, 0
    s_cbranch_scc1 {name}_ok
    {name}_spin:
    buffer_load_dword v{v}, v{vz}, {S4(SDBG)}, 0 offen sc1
    s_add_u32 s{T}, s{T}, 1
    s_waitcnt vmcnt(0)
    v_readfirstlane_b32 s{EP}, v{v}
    s_cmp_gt_u32 s{T}, {SPIN}
    s_cbranch_scc1 {name}_ok
    s_cmp_eq_u32 s{EP}, 0
    s_cbranch_scc1 {name}_spin
    {name}_ok:
    """)
def flag_store(a, soff, v0_, v1_):
    a(f"v_mov_b32 v{v0_}, s{EP}\nv_mov_b32 v{v1_}, 0\ns_mov_b64 exec, 1\nbuffer_store_dword v{v0_}, v{v1_}, {S4(WS)}, s{soff} offen sc1\ns_mov_b64 exec, -1")

def kv_lds(t, half_free=True): return (t >> 2) * 16384 + (t & 3) * 1024

def prologue(a):
    if OPT["diag"]: a("s_memrealtime s[72:73]\ns_memtime s[98:99]")
    a(f"""
    s_cmp_ge_u32 s2, 256
    s_cbranch_scc1 L_end
    s_load_dwordx2 s[{WS}:{WS+1}], s[0:1], 72
    s_load_dwordx2 s[{SX}:{SX+1}], s[0:1], 0
    s_load_dwordx2 s[{SWA}:{SWA+1}], s[0:1], 8
    s_load_dwordx2 s[{SWB}:{SWB+1}], s[0:1], 32
    s_load_dwordx2 s[{SG}:{SG+1}], s[0:1], 48
    s_load_dwordx2 s[{SOA}:{SOA+1}], s[0:1], 16
    s_load_dwordx2 s[{SOB}:{SOB+1}], s[0:1], 40
    s_load_dwordx2 s[{SOUT}:{SOUT+1}], s[0:1], 56
    s_load_dwordx2 s[{SDBG}:{SDBG+1}], s[0:1], 64
    v_lshrrev_b32 v3, 6, v0
    v_and_b32 v{LANE}, 63, v0
    s_and_b32 s4, s2, 7
    v_readfirstlane_b32 s{WAVE}, v3
    s_lshr_b32 s5, s2, 3
    v_lshlrev_b32 v{L16}, 4, v{LANE}
    """)
    m = OPT["map1"]
    if m == "r32q1": a(f"s_mov_b32 s{RB1}, s5\ns_mov_b32 s{Q1}, s4")
    elif m == "r16q2": a(f"s_and_b32 s{RB1}, s5, 15\ns_and_b32 s6, s4, 1\ns_lshl_b32 s6, s6, 4\ns_add_u32 s{RB1}, s{RB1}, s6\ns_lshr_b32 s{Q1}, s5, 4\ns_and_b32 s6, s4, 6\ns_add_u32 s{Q1}, s{Q1}, s6")
    else: a(f"s_and_b32 s{RB1}, s5, 7\ns_and_b32 s6, s4, 3\ns_lshl_b32 s6, s6, 3\ns_add_u32 s{RB1}, s{RB1}, s6\ns_lshr_b32 s{Q1}, s5, 3\ns_and_b32 s6, s4, 4\ns_add_u32 s{Q1}, s{Q1}, s6")
    a(f"""
    s_lshl_b32 s{HEAD}, s4, 2
    s_and_b32 s6, s5, 3
    s_add_u32 s{HEAD}, s{HEAD}, s6
    s_lshr_b32 s{QBK}, s5, 2
    """)
    for r, n in ((WS, WS_BYTES), (SX, 0x200000), (SWA, 0x180000), (SWB, 0x180000), (SG, 1024), (SOA, 0x80000), (SOB, 0x80000), (SOUT, 0x200000), (SDBG, 256)):
        a(f"s_mov_b32 s{r+2}, {hex(n)}\ns_mov_b32 s{r+3}, 0x20000")
    a(f"""
    s_mov_b32 s{C_L2E}, {f32(LOG2E)}
    s_mov_b32 s{C_L2E+1}, {f32(LOG2E)}
    s_mov_b32 s{C_EPS}, {f32(1e-6)}
    s_mov_b32 s{C_EPS+1}, {f32(1e-6)}
    s_mov_b32 s{VMASK}, 0xffff
    s_mov_b32 s{VMASK+1}, 0xffff
    s_cmp_lt_u32 s{WAVE}, 4
    s_waitcnt lgkmcnt(0)
    s_cbranch_scc1 L_compute
    """)

def loader(a):
    LW, SXS, SWS, LX, LWB = A0, A0 + 1, A0 + 2, A0 + 3, A0 + 4
    GF, XF, GA = 16, 80, 112
    a(f"""
    s_sub_u32 s{LW}, s{WAVE}, 4
    v_lshrrev_b32 v8, 3, v{LANE}
    v_and_b32 v9, 7, v{LANE}
    v_lshrrev_b32 v10, 4, v{LANE}
    v_xor_b32 v4, v9, v10
    v_lshlrev_b32 v4, 4, v4
    v_lshl_add_u32 v4, v8, 10, v4
    v_xor_b32 v5, 64, v4
    v_and_b32 v10, 1, v10
    v_lshlrev_b32 v10, 1, v10
    v_xor_b32 v6, v9, v10
    v_lshlrev_b32 v6, 4, v6
    v_mul_u32_u24 v8, 0xc00, v8
    v_xor_b32 v7, 64, v6
    v_add_u32 v6, v6, v8
    v_add_u32 v7, v7, v8
    s_lshl_b32 s{SXS}, s{RB1}, 16
    s_lshl_b32 s{T}, s{LW}, 14
    s_add_u32 s{SXS}, s{SXS}, s{T}
    s_lshl_b32 s{SWS}, s{Q1}, 7
    s_mul_i32 s{T}, s{LW}, {16*3072}
    s_add_u32 s{SWS}, s{SWS}, s{T}
    s_lshl_b32 s{LWB}, s{LW}, 11
    s_add_u32 s{LX}, s{LWB}, {XB}
    """)
    def xs(c):
        for ii in range(2): dma(a, LX, c*8192 + ii*1024, SXS, ii*8192 + c*128, 4 + ii, SX)
    def ws(c):
        for rr in range(2):
            for seg in range(3): dma(a, LWB, (c % 4)*SLOT + seg*8192 + rr*1024, SWS, ((c % 8)*64 + rr*8)*3072 + seg*1024, 6 + rr, SWA if c < 8 else SWB)
    for c in range(4): xs(c); ws(c)
    for c in range(4, 8): xs(c)
    for r in range(64): a(f"v_mov_b32 v{GF+r}, 0")
    a(f"v_and_b32 v11, 48, v{LANE}")
    stamp(a, 1)
    q = [("c%d" % c) for c in range(4) for _ in range(8)] + [("x%d" % c) for c in range(4, 8) for _ in range(2)]
    def wait_for(tags):
        idx = max([i for i, t in enumerate(q) if t in tags], default=-1)
        a(f"s_waitcnt vmcnt({len(q) - 1 - idx})")
        del q[:idx + 1]
    for c in range(16):
        wait_for({"c%d" % c, "x%d" % c})
        a("s_barrier")
        if c == 0: stamp(a, 2)
        if 1 <= c <= 12:
            ws(c + 3); q += ["c%d" % (c + 3)] * 6
        if c == 2:
            a(f"s_mov_b32 exec_lo, 0x00010001\ns_mov_b32 exec_hi, 0x00010001")
            for ks in range(16): a(f"buffer_load_dwordx4 {vr(GF+4*ks,4)}, v11, {S4(SG)}, 0 offen offset:{ks*64}")
            a("s_mov_b64 exec, -1"); q += ["g"] * 16
        if c == 4:
            epoch_issue(a, 12, 13); q.append("e")
        if c == 8:
            idx = q.index("e") if "e" in q else -1
            epoch_wait(a, "L_epl", 12, 13, len(q) - 1 - idx); del q[:idx + 1]
            a(f"""
            v_and_b32 v8, 15, v{LANE}
            v_lshrrev_b32 v9, 4, v{LANE}
            v_bfe_u32 v10, v{LANE}, 1, 3
            v_xor_b32 v9, v9, v10
            v_lshlrev_b32 v9, 4, v9
            v_lshl_add_u32 v14, v8, 7, v9
            v_add_u32 v14, s{LX}, v14
            v_xor_b32 v15, 64, v14
            """)
            for b in range(2):
                for k in range(8):
                    ks = 8*b + k
                    a(f"ds_read_b128 {vr(XF+4*k,4)}, v{14 + (ks & 1)} offset:{(ks >> 1)*8192}")
                for k in range(8):
                    ks = 8*b + k
                    a(f"s_waitcnt lgkmcnt({7-k})")
                    a(mfma16(GA, GF + 4*ks, XF + 4*k, GA if ks else None))
        if c == 9:
            a(f"""
            v_cvt_pk_bf16_f32 v8, v{GA}, v{GA}
            v_lshlrev_b32 v8, 16, v8
            v_mul_f32 v8, {f32(-LOG2E)}, v8
            v_exp_f32 v8, v8
            s_lshl_b32 s{T+1}, s{Q1}, 14
            v_add_f32 v8, 1.0, v8
            v_rcp_f32 v8, v8
            s_lshl_b32 s{T}, s{RB1}, 9
            v_cvt_pk_bf16_f32 v8, v8, v8
            v_lshlrev_b32 v8, 16, v8
            v_sub_f32 v9, 1.0, v8
            v_cvt_pk_bf16_f32 v9, v9, v9
            v_lshlrev_b32 v9, 16, v9
            s_add_u32 s{T+1}, s{T+1}, s{T}
            s_lshl_b32 s{T}, s{LW}, 7
            s_add_u32 s{T+1}, s{T+1}, s{T}
            s_add_u32 s{T+1}, s{T+1}, {GG}
            v_lshlrev_b32 v10, 3, v{LANE}
            s_mov_b64 exec, 0xffff
            buffer_store_dwordx2 v[8:9], v10, {S4(WS)}, s{T+1} offen sc1
            s_mov_b64 exec, -1
            """); q.append("s")
        if c == 11:
            a(f"""
            s_lshl_b32 s{T+1}, s{Q1}, 5
            s_add_u32 s{T+1}, s{T+1}, s{RB1}
            s_lshl_b32 s{T+1}, s{T+1}, 7
            s_add_u32 s{T+1}, s{T+1}, {F1}
            s_cmp_lg_u32 s{LW}, 0
            s_cbranch_scc1 L_nof1
            """)
            flag_store(a, T + 1, 12, 13)
            a.label("L_nof1")
    stamp(a, 3)
    a(f"""
    v_and_b32 v8, 31, v{LANE}
    v_lshlrev_b32 v8, 7, v8
    s_lshr_b32 s{T+1}, s{HEAD}, 2
    s_lshl_b32 s{T+1}, s{T+1}, 12
    s_add_u32 s{A0+5}, s{T+1}, {F1}
    """)
    poll_issue(a, 9, 8, A0 + 5)
    poll_wait(a, "L_f1", 9, 8, A0 + 5)
    stamp(a, 4)
    a(f"""
    s_lshl_b32 s{SXS}, s{HEAD}, 16
    s_lshl_b32 s{T}, s{QBK}, 13
    s_add_u32 s{SWS}, s{SXS}, s{T}
    s_add_u32 s{SWS}, s{SWS}, s{LWB}
    s_lshl_b32 s{LX}, s{LW}, 12
    s_and_b32 s{T}, s{LW}, 1
    s_lshl_b32 s{T}, s{T}, 15
    s_add_u32 s{SXS}, s{SXS}, s{T}
    s_lshr_b32 s{T}, s{LW}, 1
    s_lshl_b32 s{T}, s{T}, 21
    s_add_u32 s{SXS}, s{SXS}, s{T}
    """)
    for ii in range(2): dma(a, LWB, 65536 + ii*1024, SWS, QA + ii*1024, L16, WS, "sc1")
    for g in range(4):
        for n in range(4): dma(a, LX, g*16384 + n*1024, SXS, KA + (4*g + n)*1024, L16, WS, "sc1")
    a("s_waitcnt vmcnt(12)\ns_branch L_attn")

def compute(a):
    ACC = lambda br, sec, tt: 16 + 48*br + 16*sec + 4*tt
    SET = [112, 140]
    a.label("L_compute")
    a(f"""
    v_and_b32 v8, 15, v{LANE}
    v_lshrrev_b32 v9, 4, v{LANE}
    v_bfe_u32 v10, v{LANE}, 1, 3
    v_xor_b32 v10, v9, v10
    v_lshlrev_b32 v10, 4, v10
    v_lshl_add_u32 v4, v8, 7, v10
    v_add_u32 v4, {XB}, v4
    v_xor_b32 v5, 64, v4
    v_lshrrev_b32 v10, 2, v8
    v_lshl_add_u32 v10, v9, 3, v10
    v_lshlrev_b32 v6, 7, v10
    v_bfe_u32 v10, v{LANE}, 3, 2
    v_xor_b32 v10, s{WAVE}, v10
    v_lshl_add_u32 v6, v10, 5, v6
    v_and_b32 v10, 3, v{LANE}
    v_lshl_add_u32 v6, v10, 3, v6
    v_add_u32 v7, {2*SLOT}, v6
    v_and_b32 v11, 12, v{LANE}
    v_lshlrev_b32 v11, 1, v11
    v_and_b32 v10, 0x23, v{LANE}
    v_or_b32 v11, v11, v10
    v_bfe_u32 v10, v{LANE}, 4, 1
    v_lshl_add_u32 v11, v10, 2, v11
    v_lshlrev_b32 v11, 4, v11
    s_lshl_b32 s{A0}, s{Q1}, 2
    s_add_u32 s{A0}, s{A0}, s{WAVE}
    s_lshl_b32 s{A0+1}, s{A0}, 16
    s_lshl_b32 s{T}, s{RB1}, 11
    s_add_u32 s{A0+1}, s{A0+1}, s{T}
    s_add_u32 s{A0+2}, s{A0+1}, {KA}
    s_add_u32 s{A0+3}, s{A0+1}, {VA}
    s_add_u32 s{A0+4}, s{A0+1}, {QB}
    s_mov_b32 s{A0+6}, {f32(QSCALE)}
    s_mov_b32 s{A0+7}, {f32(QSCALE)}
    """)
    a(f"""
    s_or_b32 s{T}, s2, s{WAVE}
    s_cmp_lg_u32 s{T}, 0
    s_cbranch_scc1 L_noepoch
    s_memrealtime s[4:5]
    v_mov_b32 v13, 0
    s_waitcnt lgkmcnt(0)
    s_or_b32 s4, s4, 1
    v_mov_b32 v12, s4
    s_mov_b64 exec, 1
    buffer_store_dword v12, v13, {S4(SDBG)}, 0 offen sc1
    s_mov_b64 exec, -1
    L_noepoch:
    """)
    def reads(n):
        c, ks = n >> 1, n & 1
        b = SET[n & 1]
        X = lambda tt: f"ds_read_b128 {vr(b+4*tt,4)}, v{4+ks} offset:{(c % 8)*8192 + tt*2048}"
        W = lambda sec, u: f"ds_read_b64_tr_b16 {vr(b+16+4*sec+2*u,2)}, v{6 + ((c % 4) >> 1)} offset:{(c % 2)*SLOT + sec*8192 + ks*4096 + u*512}"
        return [X(0), W(0,0), W(0,1), W(1,0), W(1,1), W(2,0), W(2,1), X(1), X(2), X(3)]
    def mms(n):
        br = n >> 4; b = SET[n & 1]; M = []
        for tt in range(4):
            for sec in range(3):
                x = b + 4*tt; w = b + 16 + 4*sec; d = ACC(br, sec, tt)
                tr = sec == 0 or (sec == 1 and br == 0)
                c_ = None if (n & 15) == 0 else d
                M.append(mfma16(d, w, x, c_) if tr else mfma16(d, x, w, c_))
        return M
    def swapstore(base, vaddr, soff, swap):
        for p in range(2):
            r = base + 8*p
            pack(a, r, r, 4)
            if swap: a(f"s_nop 0\nv_permlane16_swap_b32 v{r}, v{r+2}\nv_permlane16_swap_b32 v{r+1}, v{r+3}")
            a(f"buffer_store_dwordx4 {vr(r,4)}, v{vaddr}, {S4(WS)}, s{soff} offen offset:{p*1024} sc1")
    stamp(a, 1)
    a("s_barrier")
    stamp(a, 2)
    for x in reads(0): a(x)
    for n in range(32):
        a("s_waitcnt lgkmcnt(0)")
        if n == 21: epoch_wait(a, "L_epc", 12, 13, 0)
        if (n & 1) and n < 31: a("s_barrier")
        M = mms(n); R = reads(n + 1) if n < 31 else []
        for i in range(12):
            a(M[i])
            if i < 5:
                for x in R[2*i:2*i+2]: a(x)
        if n == 8: epoch_issue(a, 12, 13)
        if n == 15:
            stamp(a, 3)
            a("s_nop 4")
            swapstore(ACC(0, 1, 0), 11, A0 + 2, True)
            swapstore(ACC(0, 2, 0), L16, A0 + 3, False)
            q = ACC(0, 0, 0)
            for i in range(0, 16, 2): a(f"v_pk_mul_f32 {vr(q+i,2)}, {vr(q+i,2)}, {sr(A0+6,2)}")
            swapstore(q, L16, A0 + 1, True)
    stamp(a, 4)
    KV, Z, ONE = 16, 20, 24
    a(f"""
    v_mov_b32 v{ONE}, 0x3f803f80
    v_mov_b32 v{ONE+1}, 0x3f803f80
    v_mov_b32 v{ONE+2}, 0x3f803f80
    v_mov_b32 v{ONE+3}, 0x3f803f80
    v_and_b32 v10, 48, v{LANE}
    v_lshl_add_u32 v8, v8, 6, v10
    s_mul_i32 s{A0+5}, s{A0}, {32*KVP_PART}
    s_mul_i32 s{T}, s{RB1}, {KVP_PART}
    s_add_u32 s{A0+5}, s{A0+5}, s{T}
    s_add_u32 s{A0+5}, s{A0+5}, {KVP}
    """)
    k = ACC(1, 1, 0); v = ACC(1, 2, 0)
    phi(a, k, 112, 16)
    for p in range(2): pack(a, v + 8*p, v + 8*p, 4)
    for p in range(2): pack(a, k + 8*p, k + 8*p, 4)
    a("s_nop 0")
    for p in range(2):
        a(mfma16(KV, k + 8*p, v + 8*p, KV if p else None))
        a(mfma16(Z, k + 8*p, ONE, Z if p else None))
    swapstore(ACC(1, 0, 0), L16, A0 + 4, True)
    a(f"""
    buffer_store_dwordx4 {vr(KV,4)}, v8, {S4(WS)}, s{A0+5} offen sc1
    s_mov_b32 exec_lo, 0x00010001
    s_mov_b32 exec_hi, 0x00010001
    buffer_store_dwordx4 {vr(Z,4)}, v10, {S4(WS)}, s{A0+5} offen offset:1024 sc1
    s_mov_b64 exec, -1
    """)

def attention(a):
    S = [4, 20]; Q = [36, 40]; O = [44, 60]; KF = [76, 80]; VF = [84, 92]
    AK, AV, IDX, PQ, GV, T0 = 100, 101, 3, 104, 108, 112
    OBF, ACC, WF, VW, VT = 144, [176, 192], [208, 216], 102, [224, 225]
    VA1, VA2, VP = 110, 111, 103
    KH, QP, SH, SKV, LKV, SP, RB3, CB, KQ, TT = A0, A0+1, A0+2, A0+3, A0+4, A0+5, A0+6, A0+7, A0+8, A0+9
    a.label("L_attn")
    stamp(a, 5)
    a(f"""
    s_lshr_b32 s{KH}, s{WAVE}, 2
    s_and_b32 s{QP}, s{WAVE}, 3
    s_lshl_b32 s{T}, s{QP}, 1
    s_add_u32 s{T+1}, s{T}, s{KH}
    s_lshl_b32 s{TO}, s{QBK}, 3
    s_add_u32 s{TO}, s{TO}, s{T+1}
    s_lshl_b32 s{T+1}, s{T+1}, 10
    s_add_u32 s{T+1}, s{T+1}, 65536
    v_add_u32 v8, s{T+1}, v{L16}
    v_xor_b32 v9, 0x400, v8
    s_lshl_b32 s{T}, s{KH}, 12
    v_add_u32 v{AK}, s{T}, v{L16}
    v_and_b32 v10, 15, v{LANE}
    v_lshrrev_b32 v11, 5, v{LANE}
    v_lshl_add_u32 v10, v11, 4, v10
    v_lshlrev_b32 v10, 4, v10
    s_add_u32 s{T}, s{T}, 8192
    v_add_u32 v{AV}, s{T}, v10
    v_mov_b32 v{IDX}, 0xdddd
    s_lshl_b32 s{SH}, s{HEAD}, 16
    s_and_b32 s{T}, s{WAVE}, 1
    s_lshl_b32 s{T+1}, s{T}, 11
    s_lshr_b32 s{T}, s{WAVE}, 1
    s_lshl_b32 s{LKV}, s{T}, 12
    s_add_u32 s{LKV}, s{LKV}, s{T+1}
    s_add_u32 s{SKV}, s{SH}, s{T+1}
    s_and_b32 s{T+1}, s{T}, 1
    s_lshl_b32 s{T+1}, s{T+1}, 15
    s_add_u32 s{SKV}, s{SKV}, s{T+1}
    s_lshr_b32 s{T}, s{T}, 1
    s_lshl_b32 s{T}, s{T}, 21
    s_add_u32 s{SKV}, s{SKV}, s{T}
    """)
    for r in range(16): a(f"v_mov_b32 v{VF[0]+r}, 0")
    a("s_mov_b32 exec_lo, 0x00010000\ns_mov_b32 exec_hi, 0x00010000")
    for r in range(16): a(f"v_mov_b32 v{VF[0]+r}, 0x3f803f80")
    a("s_mov_b64 exec, -1")
    for r in range(32): a(f"v_mov_b32 v{O[0]+r}, 0")
    a("s_barrier")
    stamp(a, 6)
    off = lambda t: kv_lds(t) - (65536 if t >= 16 else 0)
    kread = lambda t: f"ds_read_b128 {vr(KF[t&1],4)}, v{AK} offset:{off(t)}"
    def vread(t):
        a(f"s_mov_b64 exec, {sr(VMASK,2)}")
        a(f"ds_read_b128 {vr(VF[t&1],4)}, v{AV} offset:{off(t)}\nds_read_b128 {vr(VF[t&1]+4,4)}, v{AV} offset:{off(t)+512}")
        a("s_mov_b64 exec, -1")
    a(f"ds_read_b128 {vr(Q[0],4)}, v8"); a(kread(0)); a(f"ds_read_b128 {vr(Q[1],4)}, v9"); a(kread(1)); vread(0)
    a("s_waitcnt lgkmcnt(4)")
    a(mfmaz(S[0], KF[0], Q[0]))
    a("s_nop 10\ns_waitcnt lgkmcnt(0)")

    def out_slot(dst, base):
        a(f"""
        s_lshl_b32 s{T}, s{TO}, 2
        s_add_u32 s{T}, s{T}, s{HEAD}
        s_and_b32 s{T}, s{T}, 31
        s_lshl_b32 s{T}, s{T}, 10
        s_lshl_b32 s{dst}, s{TO}, 15
        s_add_u32 s{dst}, s{dst}, s{T}
        s_add_u32 s{dst}, s{dst}, {base}
        """)
    def flag_addr(dst, base):
        a(f"s_lshl_b32 s{dst}, s{TO}, 5\ns_add_u32 s{dst}, s{dst}, s{HEAD}\ns_lshl_b32 s{dst}, s{dst}, 7\ns_add_u32 s{dst}, s{dst}, {base}")
    def s1():
        a("s_waitcnt vmcnt(8)\ns_barrier")
        for g in range(4, 8):
            for k in range(2): dma(a, LKV, g*16384 + k*1024, SKV, KA + (4*g + k)*1024, L16, WS, "sc1")
    def s2():
        a(f"""
        s_waitcnt vmcnt(8)
        s_barrier
        s_cmp_lg_u32 s{WAVE}, 0
        s_cbranch_scc1 L_nof2
        s_lshl_b32 s{T+1}, s{Q1}, 5
        s_add_u32 s{T+1}, s{T+1}, s{RB1}
        s_lshl_b32 s{T+1}, s{T+1}, 7
        s_add_u32 s{T+1}, s{T+1}, {F2}
        """)
        flag_store(a, T + 1, VA1, VA2)
        a.label("L_nof2")
    def f2_issue():
        a(f"""
        v_and_b32 v{VA1}, 31, v{LANE}
        v_lshlrev_b32 v{VA1}, 7, v{VA1}
        s_lshr_b32 s{SP}, s{HEAD}, 2
        s_lshl_b32 s{SP}, s{SP}, 12
        s_add_u32 s{SP}, s{SP}, {F2}
        """)
        poll_issue(a, VP, VA1, SP)
    def f2_wait_loads():
        poll_wait(a, "L_f2", VP, VA1, SP)
        a(f"""
        v_and_b32 v{T0}, 31, v{LANE}
        v_lshrrev_b32 v{T0+1}, 5, v{LANE}
        v_lshlrev_b32 v{T0+1}, 5, v{T0+1}
        v_lshl_add_u32 v{VA1}, v{T0}, 6, v{T0+1}
        v_add_u32 v{T0+1}, 0x400, v{T0+1}
        v_cmp_gt_u32 vcc, 16, v{T0}
        v_lshlrev_b32 v{VA2}, 3, v{T0}
        s_mul_i32 s{SP}, s{HEAD}, {32*KVP_PART}
        s_mul_i32 s{T}, s{WAVE}, {4*KVP_PART}
        v_cndmask_b32 v{VA1}, v{T0+1}, v{VA1}, vcc
        s_add_u32 s{SP}, s{SP}, s{T}
        s_add_u32 s{SP}, s{SP}, {KVP}
        """)
        for p in range(4):
            a(f"buffer_load_dwordx4 {vr(T0+8*p,4)}, v{VA1}, {S4(WS)}, s{SP} offen offset:{p*KVP_PART} sc1")
            a(f"buffer_load_dwordx4 {vr(T0+8*p+4,4)}, v{VA1}, {S4(WS)}, s{SP} offen offset:{p*KVP_PART+16} sc1")
        a(f"""
        s_lshl_b32 s{T}, s{TO}, 10
        s_add_u32 s{T}, s{T}, s{SH}
        s_add_u32 s{T}, s{T}, {QB}
        buffer_load_dwordx4 {vr(PQ,4)}, v{L16}, {S4(WS)}, s{T} offen sc1
        s_lshr_b32 s{T}, s{HEAD}, 2
        s_lshl_b32 s{T}, s{T}, 14
        s_lshl_b32 s{T+1}, s{TO}, 8
        s_add_u32 s{T}, s{T}, s{T+1}
        s_add_u32 s{T}, s{T}, {GG}
        buffer_load_dwordx2 {vr(GV,2)}, v{VA2}, {S4(WS)}, s{T} offen sc1
        """)
    def ob_partial():
        a(f"s_lshl_b32 s{T}, s{WAVE}, 11\ns_add_u32 s{T}, s{T}, {XCH}\nv_add_u32 v{VA1}, s{T}, v{L16}\nv_add_u32 v{VA2}, {XCH}, v{L16}\ns_waitcnt vmcnt(0)")
        for p in (1, 3):
            for r in range(0, 8, 2): a(f"v_pk_add_f32 {vr(T0+8*(p-1)+r,2)}, {vr(T0+8*(p-1)+r,2)}, {vr(T0+8*p+r,2)}")
        for r in range(0, 8, 2): a(f"v_pk_add_f32 {vr(T0+r,2)}, {vr(T0+r,2)}, {vr(T0+16+r,2)}")
        a(f"ds_write_b128 v{VA1}, {vr(T0,4)}\nds_write_b128 v{VA1}, {vr(T0+4,4)} offset:1024")
        for j in range(4): a(f"v_lshlrev_b32 v{T0+8+2*j}, 16, v{PQ+j}\nv_and_b32 v{T0+9+2*j}, 0xffff0000, v{PQ+j}")
        phi(a, T0 + 8, T0 + 16, 8)
        pack(a, PQ, T0 + 8, 4)
    def s3():
        a(f"s_waitcnt lgkmcnt(0)\ns_barrier\nv_add_u32 v{AK}, 0x10000, v{AK}")
    def ob_reads(hf):
        for w in range(4): a(f"ds_read_b128 {vr(T0+8*w,4)}, v{VA2} offset:{(4*hf+w)*2048}\nds_read_b128 {vr(T0+8*w+4,4)}, v{VA2} offset:{(4*hf+w)*2048+1024}")
    def ob_sum(hf):
        D = OBF
        for r in range(0, 8, 2): a(f"v_pk_add_f32 {vr(T0+r,2)}, {vr(T0+r,2)}, {vr(T0+8+r,2)}")
        for r in range(0, 8, 2): a(f"v_pk_add_f32 {vr(T0+16+r,2)}, {vr(T0+16+r,2)}, {vr(T0+24+r,2)}")
        for r in range(0, 8, 2): a(f"v_pk_add_f32 {vr(T0+r,2)}, {vr(T0+r,2)}, {vr(T0+16+r,2)}")
        if hf == 0:
            for r in range(0, 8, 2): a(f"v_pk_add_f32 {vr(D+r,2)}, {vr(T0+r,2)}, 0")
        else:
            for r in range(0, 8, 2): a(f"v_pk_add_f32 {vr(D+r,2)}, {vr(D+r,2)}, {vr(T0+r,2)}")
            pack(a, D, D, 4)
            a("s_nop 1")
            a(mfmaz(T0, D, PQ))
    def ob_store():
        out_slot(SP, OB)
        a(f"v_add_f32 v{VA1}, s{C_EPS}, v{T0+8}\nv_rcp_f32 v{VA1}, v{VA1}\ns_nop 0\nv_mul_f32 v{VA1}, v{VA1}, v{GV+1}")
        for r in range(8): a(f"v_mul_f32 v{T0+r}, v{T0+r}, v{VA1}")
        pack(a, T0, T0, 4)
        a(f"buffer_store_dwordx4 {vr(T0,4)}, v{L16}, {S4(WS)}, s{SP} offen sc1")
    def f3_flag():
        flag_addr(SP, F3)
        a("s_waitcnt vmcnt(0)")
        flag_store(a, SP, VA1, VA2)
    WSRC, WLDS, SF = SKV, LKV, SH
    def s4():
        a(f"""
        s_barrier
        s_and_b32 s{T}, s2, 7
        s_lshl_b32 s{RB3}, s{T}, 2
        s_lshr_b32 s{T}, s2, 6
        s_add_u32 s{RB3}, s{RB3}, s{T}
        s_bfe_u32 s{CB}, s2, 0x30003
        s_and_b32 s{TT}, s{WAVE}, 1
        s_lshr_b32 s{KQ}, s{WAVE}, 1
        v_lshrrev_b32 v{VA1}, 3, v{LANE}
        v_and_b32 v{VA2}, 7, v{LANE}
        v_bfe_u32 v{VW}, v{LANE}, 4, 1
        v_lshlrev_b32 v{VW}, 2, v{VW}
        v_xor_b32 v{VW}, v{VA2}, v{VW}
        v_lshlrev_b32 v{VW}, 4, v{VW}
        v_lshl_add_u32 v{VW}, v{VA1}, 10, v{VW}
        s_lshl_b32 s{WLDS}, s{WAVE}, 10
        s_lshl_b32 s{WSRC}, s{WAVE}, 13
        s_lshl_b32 s{T}, s{CB}, 7
        s_add_u32 s{WSRC}, s{WSRC}, s{T}
        """)
        for i in range(8): dma(a, WLDS, i*8192, WSRC, i*65536, VW, SOB)
        for i in range(4): dma(a, WLDS, 65536 + i*8192, WSRC, i*65536, VW, SOA)
    def t3(dst): a(f"s_lshl_b32 s{dst}, s{RB3}, 1\ns_add_u32 s{dst}, s{dst}, s{TT}")
    def poll3_addr(base):
        t3(SP)
        a(f"""
        s_lshl_b32 s{SP}, s{SP}, 5
        s_lshl_b32 s{T}, s{KQ}, 3
        s_add_u32 s{SP}, s{SP}, s{T}
        s_lshl_b32 s{SP}, s{SP}, 7
        s_add_u32 s{SP}, s{SP}, {base}
        v_and_b32 v{VA1}, 7, v{LANE}
        v_lshlrev_b32 v{VA1}, 7, v{VA1}
        """)
    def o_loads(dst, base):
        t3(SP)
        for hf in range(2):
            a(f"""
            s_lshl_b32 s{T}, s{SP}, 2
            s_lshl_b32 s{T+1}, s{KQ}, 3
            s_add_u32 s{T}, s{T}, s{T+1}
            s_add_u32 s{T}, s{T}, {4*hf}
            s_and_b32 s{T}, s{T}, 31
            s_lshl_b32 s{T}, s{T}, 10
            s_lshl_b32 s{T+1}, s{SP}, 15
            s_add_u32 s{T}, s{T}, s{T+1}
            s_add_u32 s{T}, s{T}, {base}
            """)
            for i in range(4): a(f"buffer_load_dwordx4 {vr(dst+16*hf+4*i,4)}, v{L16}, {S4(WS)}, s{T} offen offset:{i*1024} sc1")
    def f3_issue(): poll3_addr(F3); poll_issue(a, VP, VA1, SP)
    def f3_wait_loads(): poll_wait(a, "L_f3", VP, VA1, SP); o_loads(OBF, OB)

    hooks = {4: [s1], 12: [s2], 18: [f2_issue], 20: [f2_wait_loads], 26: [ob_partial], 28: [s3, lambda: ob_reads(0)],
             30: [lambda: ob_sum(0), lambda: ob_reads(1), lambda: a(f"v_add_u32 v{AV}, 0x10000, v{AV}")], 32: [lambda: ob_sum(1)], 33: [ob_store], 40: [f3_flag],
             48: [s4], 52: [f3_issue], 55: [f3_wait_loads]}
    NT = 32
    for i in range(2 * NT):
        t, q = i >> 1, i & 1
        cur, nxt = S[i & 1], S[(i + 1) & 1]
        e = [f"v_exp_f32 v{cur+r}, v{cur+r}" for r in range(16)]
        for h in hooks.get(i, []): h()
        [a(x) for x in e[0:2]]
        if i > 0: a(smfmac(O[q ^ 1], VF[((i - 1) >> 1) & 1] + 4, nxt + 8, IDX))
        if q == 0 and t + 1 < NT: vread(t + 1)
        [a(x) for x in e[2:5]]
        if i + 1 < 2 * NT:
            t1, q1 = (i + 1) >> 1, (i + 1) & 1
            if q1 == 0: a("s_waitcnt lgkmcnt(0)")
            a(mfmaz(nxt, KF[t1 & 1], Q[q1]))
            if q1 == 1 and t1 + 2 < NT: a(kread(t1 + 2))
        [a(x) for x in e[5:10]]
        a(smfmac(O[q], VF[t & 1], cur, IDX))
        [a(x) for x in e[10:16]]
    a("s_nop 1")
    a(smfmac(O[1], VF[(NT - 1) & 1] + 4, S[1] + 8, IDX))
    stamp(a, 7)
    a(f"""
    s_mul_i32 s{T}, s{WAVE}, 2304
    s_add_u32 s{T}, s{T}, {XCH}
    v_add_u32 v9, s{T}, v{L16}
    v_lshl_add_u32 v11, v{LANE}, 2, s{T}
    s_xor_b32 s{T}, s{WAVE}, 4
    s_mul_i32 s{T}, s{T}, 2304
    s_add_u32 s{T}, s{T}, {XCH}
    v_add_u32 v10, s{T}, v{L16}
    v_and_b32 v12, 31, v{LANE}
    v_lshl_add_u32 v12, v12, 2, s{T}
    s_nop 1
    ds_write_b128 v9, {vr(O[1],4)}
    ds_write_b128 v9, {vr(O[1]+4,4)} offset:1024
    ds_write_b32 v11, v{O[1]+8} offset:2048
    v_mov_b32 v13, v{O[0]+8}
    s_mov_b32 s4, {f32(2.0**-30)}
    s_mov_b32 s5, {f32(2.0**60)}
    v_permlane32_swap_b32 v{O[0]+8}, v13
    s_waitcnt vmcnt(0) lgkmcnt(0)
    s_barrier
    ds_read_b128 {vr(T0,4)}, v10
    ds_read_b128 {vr(T0+4,4)}, v10 offset:1024
    ds_read_b32 v{T0+8}, v12 offset:2048
    s_movk_i32 s3, 0x207
    """)
    out_slot(SP, OA)
    a("s_waitcnt lgkmcnt(0)")
    for r in range(9): a(f"v_add_f32 v{O[0]+r}, v{O[0]+r}, v{T0+r}")
    a(f"v_cmp_nle_f32 s[6:7], s4, v{O[0]+8}\nv_cmp_nge_f32 vcc, s5, v{O[0]+8}\ns_or_b64 s[6:7], s[6:7], vcc")
    for r in range(8): a(f"v_cmp_class_f32 vcc, v{O[0]+r}, s3\ns_or_b64 s[6:7], s[6:7], vcc")
    a("s_cmp_lg_u64 s[6:7], 0\ns_cbranch_scc1 L_slow")
    a.label("L_fin")
    a(f"v_rcp_f32 v12, v{O[0]+8}\ns_nop 0\nv_mul_f32 v12, v12, v{GV}")
    for r in range(8): a(f"v_mul_f32 v{O[0]+r}, v{O[0]+r}, v12")
    pack(a, O[0], O[0], 4)
    a(f"buffer_store_dwordx4 {vr(O[0],4)}, v{L16}, {S4(WS)}, s{SP} offen sc1")
    for i in range(4, 8): dma(a, WLDS, 65536 + i*8192, WSRC, i*65536, VW, SOA)
    stamp(a, 8)
    a(f"""
    v_lshrrev_b32 v12, 5, v{LANE}
    v_bfe_u32 v13, v{LANE}, 2, 2
    v_lshl_add_u32 v13, v12, 2, v13
    v_lshlrev_b32 v{VT[0]}, 7, v13
    v_bfe_u32 v13, v{LANE}, 3, 1
    v_lshl_add_u32 v{VT[0]}, v13, 6, v{VT[0]}
    v_bfe_u32 v13, v{LANE}, 4, 1
    v_lshl_add_u32 v{VT[0]}, v13, 5, v{VT[0]}
    v_and_b32 v13, 3, v{LANE}
    v_lshl_add_u32 v{VT[0]}, v13, 3, v{VT[0]}
    s_lshl_b32 s{T}, s{KQ}, 14
    v_add_u32 v{VT[0]}, s{T}, v{VT[0]}
    v_xor_b32 v{VT[1]}, 64, v{VT[0]}
    """)
    def wreads(i):
        b = WF[i & 1]
        return [f"ds_read_b64_tr_b16 {vr(b+4*nt+2*u,2)}, v{VT[nt]} offset:{i*2048+u*1024}" for nt in range(2) for u in range(2)]
    def half(frags, first, vm):
        for x in wreads(0): a(x)
        for i in range(8):
            a(f"s_waitcnt lgkmcnt(0)" + (f" vmcnt({7-i})" if vm else ""))
            b = WF[i & 1]
            a(mfmaz(ACC[0], b, frags + 4*i) if first and i == 0 else mfma(ACC[0], b, frags + 4*i, ACC[0]))
            if i < 7:
                for x in wreads(i + 1): a(x)
            a(mfmaz(ACC[1], b + 4, frags + 4*i) if first and i == 0 else mfma(ACC[1], b + 4, frags + 4*i, ACC[1]))
    half(OBF, True, False)
    flag_addr(SF, F4)
    a("s_waitcnt vmcnt(4)")
    flag_store(a, SF, VA1, VA2)
    poll3_addr(F4)
    a(f"v_add_u32 v{VT[0]}, 0x10000, v{VT[0]}\nv_add_u32 v{VT[1]}, 0x10000, v{VT[1]}\ns_waitcnt vmcnt(1)\ns_barrier")
    stamp(a, 9)
    poll_issue(a, VP, VA1, SP)
    poll_wait(a, "L_f4", VP, VA1, SP)
    stamp(a, 10)
    o_loads(4, OA)
    half(4, False, True)
    stamp(a, 11)
    AF = 48
    a(f"""
    v_and_b32 v13, 31, v{LANE}
    v_and_b32 v14, 7, v{LANE}
    v_lshlrev_b32 v4, 4, v14
    v_lshl_add_u32 v4, v13, 8, v4
    v_bfe_u32 v14, v{LANE}, 1, 1
    v_lshrrev_b32 v12, 5, v{LANE}
    v_xor_b32 v14, v14, v12
    v_lshl_add_u32 v4, v14, 7, v4
    s_lshl_b32 s{T}, s{KQ}, 14
    s_lshl_b32 s{T+1}, s{TT}, 13
    s_add_u32 s{T}, s{T}, s{T+1}
    v_add_u32 v4, s{T}, v4
    """)
    for nt in range(2):
        for rq in range(4): a(f"v_xor_b32 v5, {(4*nt+rq)*16}, v4\nds_write_b128 v5, {vr(ACC[nt]+4*rq,4)}")
    a(f"""
    v_lshrrev_b32 v8, 3, v0
    v_and_b32 v9, 7, v0
    v_and_b32 v10, 7, v8
    v_xor_b32 v10, v10, v9
    v_lshlrev_b32 v4, 4, v10
    v_lshl_add_u32 v4, v8, 8, v4
    v_bfe_u32 v10, v8, 1, 1
    v_lshl_add_u32 v4, v10, 7, v4
    v_xor_b32 v5, 0x80, v4
    v_lshlrev_b32 v6, 4, v9
    v_lshl_add_u32 v6, v8, 10, v6
    s_lshl_b32 s{SP}, s{RB3}, 16
    s_lshl_b32 s{T}, s{CB}, 7
    s_add_u32 s{SP}, s{SP}, s{T}
    s_waitcnt lgkmcnt(0)
    s_barrier
    """)
    for kq in range(4): a(f"ds_read_b128 {vr(AF+8*kq,4)}, v4 offset:{kq*16384}\nds_read_b128 {vr(AF+8*kq+4,4)}, v5 offset:{kq*16384}")
    a("s_waitcnt lgkmcnt(4)")
    for r in range(0, 8, 2): a(f"v_pk_add_f32 {vr(AF+r,2)}, {vr(AF+r,2)}, {vr(AF+8+r,2)}")
    a("s_waitcnt lgkmcnt(0)")
    for r in range(0, 8, 2): a(f"v_pk_add_f32 {vr(AF+16+r,2)}, {vr(AF+16+r,2)}, {vr(AF+24+r,2)}")
    for r in range(0, 8, 2): a(f"v_pk_add_f32 {vr(AF+r,2)}, {vr(AF+r,2)}, {vr(AF+16+r,2)}")
    pack(a, AF, AF, 4)
    a(f"buffer_store_dwordx4 {vr(AF,4)}, v6, {S4(SOUT)}, s{SP} offen")
    if OPT["diag"]:
        a(f"s_waitcnt vmcnt(0)\ns_memrealtime s[96:97]\ns_memtime s[4:5]\ns_waitcnt lgkmcnt(0)\ns_sub_u32 s4, s4, s98\ns_mov_b64 exec, 1")
        for k in range(13): a(f"v_mov_b32 v{4+k}, s{72+2*k}")
        a(f"v_mov_b32 v17, s4\ns_lshl_b32 s4, s2, 3\ns_add_u32 s4, s4, s{WAVE}\ns_lshl_b32 s4, s4, 6\ns_add_u32 s4, s4, {STAMP}\nv_mov_b32 v3, 0")
        for k in range(4): a(f"buffer_store_dwordx4 {vr(4+4*k,4)}, v3, {S4(WS)}, s4 offen offset:{16*k}")
    a("s_endpgm")
    a.label("L_slow")
    M, MN, AL = 12, 13, 14
    a(f"""
    v_mov_b32 v{M}, 0xff800000
    v_and_b32 v7, 15, v{LANE}
    v_lshrrev_b32 v5, 5, v{LANE}
    v_lshl_add_u32 v7, v5, 4, v7
    v_lshlrev_b32 v7, 4, v7
    s_add_u32 s4, s{SH}, {KA}
    s_add_u32 s5, s{SH}, {VA}
    s_mov_b32 s3, 0
    """)
    for r in range(16): a(f"v_mov_b32 v{O[0]+r}, 0")
    a.label("L_slow_loop")
    a(f"""
    buffer_load_dwordx4 {vr(KF[0],4)}, v{L16}, {S4(WS)}, s4 offen sc1
    s_mov_b64 exec, {sr(VMASK,2)}
    buffer_load_dwordx4 {vr(VF[0],4)}, v7, {S4(WS)}, s5 offen sc1
    buffer_load_dwordx4 {vr(VF[0]+4,4)}, v7, {S4(WS)}, s5 offen offset:512 sc1
    s_mov_b64 exec, -1
    s_waitcnt vmcnt(0)
    """)
    a(mfmaz(S[1], KF[0], Q[0]))
    a("s_nop 11")
    a(f"v_max3_f32 v{MN}, v{M}, v{S[1]}, v{S[1]+1}")
    for r in range(2, 16, 2): a(f"v_max3_f32 v{MN}, v{MN}, v{S[1]+r}, v{S[1]+r+1}")
    a(f"""
    v_mov_b32 v{AL}, v{MN}
    s_nop 1
    v_permlane32_swap_b32 v{AL}, v{MN}
    v_max_f32 v{MN}, v{MN}, v{AL}
    v_sub_f32 v{AL}, v{M}, v{MN}
    v_exp_f32 v{AL}, v{AL}
    v_mov_b32 v{M}, v{MN}
    """)
    for r in range(16): a(f"v_sub_f32 v{S[1]+r}, v{S[1]+r}, v{MN}")
    for r in range(16): a(f"v_exp_f32 v{S[1]+r}, v{S[1]+r}")
    for r in range(9): a(f"v_mul_f32 v{O[0]+r}, v{O[0]+r}, v{AL}")
    a("s_nop 1")
    a(smfmac(O[0], VF[0], S[1], IDX))
    a(smfmac(O[0], VF[0] + 4, S[1] + 8, IDX))
    a(f"""
    s_add_u32 s4, s4, 1024
    s_add_u32 s5, s5, 1024
    s_add_u32 s3, s3, 1
    s_nop 7
    s_cmp_lt_u32 s3, 64
    s_cbranch_scc1 L_slow_loop
    v_mov_b32 v13, v{O[0]+8}
    s_nop 1
    v_permlane32_swap_b32 v{O[0]+8}, v13
    s_branch L_fin
    """)

def build():
    a = Asm()
    prologue(a); loader(a); compute(a); attention(a)
    a.label("L_end"); a("s_endpgm")
    bad = check(a.L, "fused")
    hdr = open("gated_mix__mha_block__linear_attn_block__prompt.s.ref").read().split("; @launch")[0]
    s = hdr + "; @launch grid=(256,1,1) block=(512,1,1) lds=163840\n"
    s += f'.amdgcn_target "amdgcn-amd-amdhsa--gfx950"\n.text\n.globl {NAME}\n.p2align 8\n.type {NAME},@function\n{NAME}:\n' + a.text()
    s += f""".section .rodata,"a"
.p2align 6
.amdhsa_kernel {NAME}
  .amdhsa_next_free_vgpr 232
  .amdhsa_next_free_sgpr 102
  .amdhsa_accum_offset 232
  .amdhsa_group_segment_fixed_size 0
  .amdhsa_kernarg_size 80
  .amdhsa_user_sgpr_count 2
  .amdhsa_user_sgpr_kernarg_segment_ptr 1
  .amdhsa_system_sgpr_workgroup_id_x 1
.end_amdhsa_kernel
"""
    return s, bad

if __name__ == "__main__":
    for o in sys.argv[2:]:
        k, _, v = o.partition("=")
        OPT[k] = v if v else True
    s, bad = build()
    open(sys.argv[1], "w").write(s)
    print("hazards:", bad, "bytes:", len(s))
```

```python
import sys
import genf
from genf import *
def desc(name, vgpr, sgpr):
    return f""".section .rodata,"a"
.p2align 6
.amdhsa_kernel {name}
  .amdhsa_next_free_vgpr {vgpr}
  .amdhsa_next_free_sgpr {sgpr}
  .amdhsa_accum_offset {vgpr}
  .amdhsa_group_segment_fixed_size 0
  .amdhsa_kernarg_size 80
  .amdhsa_user_sgpr_count 2
  .amdhsa_user_sgpr_kernarg_segment_ptr 1
  .amdhsa_system_sgpr_workgroup_id_x 1
.end_amdhsa_kernel
"""
def head(name): return f".text\n.globl {name}\n.p2align 8\n.type {name},@function\n{name}:\n"
for o in sys.argv[1:]:
    k, _, v = o.partition("="); OPT[k] = v if v else True
OPT["diag"] = True
s, bad = build()
L = f"; @launch kernel={NAME} grid=(256,1,1) block=(512,1,1) lds=163840"
W = "; @launch kernel=wait_kernel grid=(1,1,1) block=(64,1,1) lds=0"
old = "; @launch grid=(256,1,1) block=(512,1,1) lds=163840"
def waiter(k, wg=8):
    body = f"""    s_cmp_lg_u32 s2, 0
    s_cbranch_scc1 W_end
    s_memrealtime s[10:11]
    s_load_dwordx2 s[4:5], s[0:1], 72
    s_waitcnt lgkmcnt(0)
    s_add_u32 s4, s4, {STAMP + wg * 512 + 4 * max(k, 0)}
    s_addc_u32 s5, s5, 0
    s_load_dword s6, s[4:5], 0
    s_waitcnt lgkmcnt(0)
""" + ("    s_mov_b32 s6, s10\n" if k < 0 else "") + """    s_mov_b32 s12, 0
W_loop:
    s_memrealtime s[8:9]
    s_waitcnt lgkmcnt(0)
    s_sub_u32 s8, s8, s6
    s_add_u32 s12, s12, 1
    s_cmp_gt_u32 s12, 20000
    s_cbranch_scc1 W_end
    s_cmp_lt_u32 s8, 6000
    s_cbranch_scc1 W_loop
W_end:
    s_endpgm
"""
    return head("wait_kernel") + body + desc("wait_kernel", 8, 32)
open("vL.s", "w").write(s.replace(old, L))
for k in (0, 2, 3, 4, 6, 7, 10, 12, -1):
    open(f"vS{k}.s", "w").write(s.replace(old, L + "\n" + W) + waiter(k))
```
